```python
import torch

def _softmax(x, axis=-1):
    return torch.softmax(x, dim=axis)
def _gelu(x):
    return torch.nn.functional.gelu(x, approximate="tanh")
def _silu(x):
    return torch.nn.functional.silu(x)
def _sigmoid(x):
    return torch.sigmoid(x)
def _layernorm(x, axis=-1, eps=1e-5):
    m = x.mean(dim=axis, keepdim=True)
    v = x.var(dim=axis, keepdim=True, unbiased=False)
    return (x - m) / torch.sqrt(v + eps)
def _scatter_add(tgt, idx, src, axis=0):
    return tgt.clone().index_add_(axis, idx, src)
def _segment_sum(src, seg, n):
    out = torch.zeros((n,) + src.shape[1:], dtype=src.dtype)
    return out.index_add_(0, seg, src)
def _pad(x, pw):
    flat = tuple(v for pair in reversed(pw) for v in pair)
    return torch.nn.functional.pad(x, flat)

kernel_name = 'gated_mix__sliding_block_cached__glu_gated_swiglu__decode'

def setup_inputs():

    _w = (lambda a: (lambda t: t.to(torch.bfloat16) if t.is_floating_point() else t)(torch.as_tensor(a)))
    def _A_setup():
        B, Sq, D = 1, 1, 640
        Hq, Hkv, Sk, Dh = 32, 32, 32768, 192
        assert Hq % Hkv == 0, (Hq, Hkv)
        return {
            "x": _w((lambda *s: torch.randn(*s, dtype=torch.bfloat16) * 0.05)(B, Sq, D)),
            "k_cache": _w((lambda *s: torch.randn(*s, dtype=torch.bfloat16) * 6.4)(B, Hkv, Sk, Dh)),
            "v_cache": _w((lambda *s: torch.randn(*s, dtype=torch.bfloat16) * 0.05)(B, Hkv, Sk, Dh)),
            "wq": _w((lambda *s: torch.randn(*s, dtype=torch.bfloat16) * 3.2)(D, Hq * Dh) * (D ** -0.5)),
            "wo": _w((lambda *s: torch.randn(*s, dtype=torch.bfloat16) * 0.05)(Hq * Dh, D) * ((Hq * Dh) ** -0.5)),
        }
    _A_in = _A_setup()

    def _B_setup():
        B, S, D, F = 1, 1, 640, 1536
        return {
            "x": _w((lambda *s: torch.randn(*s, dtype=torch.bfloat16) * 0.05)(B, S, D)),
            "w1": _w((lambda *s: torch.randn(*s, dtype=torch.bfloat16) * 0.4)(D, F) * (2.0 / D) ** 0.5),
            "w3": _w((lambda *s: torch.randn(*s, dtype=torch.bfloat16) * 0.4)(D, F) * (2.0 / D) ** 0.5),
            "w2": _w((lambda *s: torch.randn(*s, dtype=torch.bfloat16) * 0.4)(F, D) * (2.0 / F) ** 0.5),
        }
    _B_in = _B_setup()

    return {
        "A_x": _A_in["x"],
        "A_k_cache": _A_in["k_cache"],
        "A_v_cache": _A_in["v_cache"],
        "A_wq": _A_in["wq"],
        "A_wo": _A_in["wo"],
        "B_x": _B_in["x"],
        "B_w1": _B_in["w1"],
        "B_w3": _B_in["w3"],
        "B_w2": _B_in["w2"],
        "gate_w": _w((lambda *s: torch.randn(*s, dtype=torch.bfloat16) * 0.1)(640) * 16.0),
    }

def reference(A_x, A_k_cache, A_v_cache, A_wq, A_wo, B_x, B_w1, B_w3, B_w2, gate_w):
    def _A_ref(x, k_cache, v_cache, wq, wo):
        B, Sq, D = x.shape
        Hq, Dh = 32, 192
        Hkv, Sk = k_cache.shape[1], k_cache.shape[2]
        W = min(4096, max(256, Sk // 4))
        rep = Hq // Hkv
        q = (lambda x, *d: x.permute(*d))((x @ wq).reshape(B, Sq, Hq, Dh), 0, 2, 1, 3)
        k = (lambda x, n, axis: torch.repeat_interleave(x, n, dim=axis))(k_cache[:, :, Sk - W:, :], rep, axis=1)
        v = (lambda x, n, axis: torch.repeat_interleave(x, n, dim=axis))(v_cache[:, :, Sk - W:, :], rep, axis=1)
        scores = torch.einsum("bhqd,bhkd->bhqk", q, k) * (Dh ** -0.5)
        p = _softmax(scores, axis=-1)
        o = torch.einsum("bhqk,bhkd->bhqd", p, v)
        return (lambda x, *d: x.permute(*d))(o, 0, 2, 1, 3).reshape(B, Sq, Hq * Dh) @ wo

    def _B_ref(x, w1, w3, w2):
        gate = torch.einsum("bsd,df->bsf", x, w1)
        up = torch.einsum("bsd,df->bsf", x, w3)
        h = _silu(gate) * up
        out = torch.einsum("bsf,fd->bsd", h, w2)
        return out

    x = A_x
    g = _sigmoid((x * gate_w).sum(-1, keepdims=True))
    a = _A_ref(x, A_k_cache, A_v_cache, A_wq, A_wo)
    b = _B_ref(x, B_w1, B_w3, B_w2)
    return g * a + (1 - g) * b
```

```python
import re
TRANS = ("v_exp_", "v_log_", "v_rcp_", "v_rsq_", "v_sqrt_", "v_sin_", "v_cos_")

def regs_of(tok):
    tok = tok.strip()
    tok = tok.lstrip("-")
    m = re.fullmatch(r"abs\((.*)\)", tok)
    if m: tok = m.group(1)
    m = re.fullmatch(r"([vsa])\[(\d+):(\d+)\]", tok)
    if m: return [f"{m.group(1)}{i}" for i in range(int(m.group(2)), int(m.group(3))+1)]
    m = re.fullmatch(r"([vsa])(\d+)", tok)
    if m: return [tok]
    if tok in ("vcc", "vcc_lo", "vcc_hi"): return ["vcc"]
    if tok in ("exec", "exec_lo", "exec_hi"): return ["exec"]
    if tok == "m0": return ["m0"]
    return []

class Ins:
    def __init__(self, text):
        self.text = text
        t = text.split(";")[0].strip()
        self.label = t.endswith(":")
        self.directive = t.startswith(".")
        self.op = ""; self.w = set(); self.r = set(); self.kind = "none"; self.srcC = set(); self.data = set()
        if self.label or self.directive or not t: return
        parts = t.split(None, 1)
        self.op = op = parts[0]
        rest = parts[1] if len(parts) > 1 else ""
        ops = []; cur = ""; d = 0
        for ch in rest:
            if ch in "[(": d += 1
            if ch in "])": d -= 1
            if ch == "," and d == 0: ops.append(cur.strip()); cur = ""
            else: cur += ch
        if cur.strip(): ops.append(cur.strip())
        if ops:
            last = ops[-1].split()
            mods = " ".join(last[1:]); ops[-1] = last[0]
        else: mods = ""
        self.mods = mods
        R = [regs_of(o) for o in ops]
        flat = lambda xs: set(x for l in xs for x in l)
        self.dpp = "_dpp" in op
        if op.startswith("v_smfmac"):
            self.kind = "mfma"; self.w = set(R[0]); self.r = flat(R); self.srcC = set(R[0]); self.srcAB = flat(R[1:])
        elif op.startswith("v_mfma"):
            self.kind = "mfma"; self.w = set(R[0]); self.r = flat(R[1:]); self.srcC = set(R[3]); self.srcAB = flat(R[1:3])
        elif op.startswith("v_"):
            self.kind = "valu"
            if "permlane" in op and "swap" in op:
                self.w = flat(R); self.r = flat(R)
            else:
                self.w = set(R[0]); self.r = flat(R[1:])
                if op.startswith(("v_dot2c", "v_fmac", "v_pk_fmac")): self.r |= self.w
                if op.startswith(("v_add_co", "v_sub_co", "v_addc_co")): self.w |= set(R[1])
        elif op.startswith(("buffer_", "global_")):
            self.kind = "vmem"
            if "load" in op: self.w = set(R[0]); self.r = flat(R[1:])
            else:
                self.r = flat(R)
                self.data = set(R[0]) if op.startswith("buffer_") else set(R[1])
        elif op.startswith("ds_"):
            self.kind = "ds"
            if op.startswith(("ds_read", "ds_bpermute", "ds_permute", "ds_swizzle")): self.w = set(R[0]); self.r = flat(R[1:])
            else: self.r = flat(R)
        else:
            self.kind = "salu"
            if op.startswith(("s_cmp", "s_bitcmp", "s_cbranch", "s_branch", "s_waitcnt", "s_nop", "s_barrier", "s_endpgm", "s_sleep", "s_setprio")): self.r = flat(R)
            elif R: self.w = set(R[0]); self.r = flat(R[1:])
    def states(self):
        if self.label or self.directive or not self.op: return 0
        if self.op == "s_nop": return int(self.text.split(";")[0].split()[1]) + 1
        return 1

def need(p, c):
    n = 0
    isv = lambda s: set(x for x in s if x[0] in "va" and x != "vcc")
    iss = lambda s: set(x for x in s if x[0] == "s" or x == "vcc")
    if p.kind == "valu":
        pv = isv(p.w); ps = iss(p.w)
        if c.kind == "valu":
            if c.dpp and pv & c.r: n = max(n, 2)
            if "permlane" in c.op and pv & c.r: n = max(n, 2)
            if c.op.startswith(("v_readfirstlane", "v_readlane")) and pv & c.r: n = max(n, 1)
            if ps & c.r: n = max(n, 2)
            if p.op.startswith(TRANS) and pv & c.r: n = max(n, 1)
            if p.op.startswith("v_dot") and (pv & (c.r | c.w)):
                if c.op.split("_e")[0] != p.op.split("_e")[0]: n = max(n, 3)
        if p.op.startswith("v_dot") and c.kind in ("ds", "vmem", "mfma") and pv & (c.r | c.w): n = max(n, 3)
        if p.op.startswith(TRANS) and c.kind in ("ds", "vmem") and pv & c.r: n = max(n, 1)
        if c.kind == "mfma" and pv & c.r: n = max(n, 2)
        if c.kind == "vmem" and ps & c.r: n = max(n, 5)
        if c.kind == "salu" and ps & c.r and not c.op.startswith("s_cbranch"): n = max(n, 1)
    if p.kind == "mfma":
        big = "32x32" in p.op
        if c.kind in ("valu", "vmem", "ds") and p.w & (c.r | c.w): n = max(n, 12 if big else 8)
        if c.kind == "mfma":
            if p.w & c.srcAB: n = max(n, 12 if big else 8)
            if p.w & c.srcC and p.w != c.srcC: n = max(n, 10 if big else 6)
            if p.w & c.w and not (p.w & c.srcC): n = max(n, 12 if big else 8)
        if c.kind == "valu" and p.srcC & c.w: n = max(n, 7 if big else 3)
    if p.kind == "vmem" and p.data and len(p.data) >= 3:
        if p.data & c.w: n = max(n, 2)
    if p.kind == "salu" and "m0" in p.w and c.kind == "vmem" and "lds" in getattr(c, "mods", ""): n = max(n, 1)
    return n

def fix_hazards(lines):
    out = []
    for t in lines:
        c = Ins(t)
        if c.op:
            dist = 0; req = 0
            for p in reversed(out):
                if dist >= 20: break
                if p.op:
                    k = need(p, c) - dist
                    req = max(req, k)
                dist += p.states()
            if req > 0:
                out.append(Ins(f"  s_nop {req-1}"))
        out.append(c)
    return [o.text for o in out]

class Prog:
    def __init__(self):
        self.L = []; self.vm = []
    def I(self, s):
        for l in s.strip("\n").split("\n"):
            l = l.strip()
            if not l: continue
            self.L.append(l if l.endswith(":") else "  " + l)
    def vmem(self, name, s):
        self.I(s); self.vm.append(name)
    def wait(self, name, lgkm=False):
        if name not in self.vm:
            if lgkm: self.I("s_waitcnt lgkmcnt(0)")
            return
        i = self.vm.index(name)
        n = len(self.vm) - 1 - i
        assert n <= 63
        self.I(f"s_waitcnt vmcnt({n})" + (" lgkmcnt(0)" if lgkm else ""))
        self.vm = self.vm[i+1:]
    def cap(self, c):
        big = [n for n in self.vm if n[0] in "AKVW"] if getattr(self, "bigonly", False) else self.vm
        if len(big) > c:
            self.wait(big[len(big)-c-1])
```

```python
import sys, math, struct
from asmlib import Prog, fix_hazards, Ins
KN = "gated_mix__sliding_block_cached__glu_gated_swiglu__decode"
HDR = open("cdna_kernels/" + KN + ".s.ref").read().split("; Override launch")[0]

def f32(x): return "0x%08x" % struct.unpack("<I", struct.pack("<f", x))[0]
LOG2E = 1.4426950408889634
CS = LOG2E / math.sqrt(192.0)

QS, HS, ML, OS, FS = 0x1000, 0x50000, 0x70000, 0x80000, 0xC0000
WS_BYTES = 0x110000
R0, R1, R2, QL = 0, 12544, 12544 + 8704, 12544 + 8704 + 12800
LDS_BYTES = QL + 384
sH, sC, sW, sTAG = "s30", "s31", "s32", "s33"
K_, V_, A_, W_, X_, WS_, O_, G_ = "s[36:39]", "s[40:43]", "s[44:47]", "s[48:51]", "s[52:55]", "s[56:59]", "s[60:63]", "s[64:67]"
SO = ["0", "s68", "s69", "s70"]
sPUB1, sQP, sMLP, sMLQ, sOP, sP2, sFP, sRED, sSPIN, sCS, sRHO, sL, sW3 = ["s%d" % i for i in range(71, 84)]
vKV, vA, vX = "v1", "v2", "v3"
M = [4, 5, 6, 7]
AB = [8, 12]
D = [16, 20, 24]
Q = [28, 32, 36]
S = list(range(40, 48))
P = 48
vWR0, vRD0, vU16, vPOLL, vBP, vF = "v52", "v53", "v54", "v55", "v56", "v57"
T = list(range(58, 64))
KR = [64 + 4*i for i in range(24)]
VR = [160 + 4*i for i in range(24)]
AR = VR[18:24]
WR = KR[0:6]
vW, vWR1, vRD1 = "v88", "v89", "v90"
AB3 = [92, 96, 100]
def r4(b): return f"v[{b}:{b+3}]"
def r2(b): return f"v[{b}:{b+1}]"
DPPM = "row_mask:0xf bank_mask:0xf"

class G(Prog):
    def __init__(self, role, cfg):
        super().__init__()
        self.role = role; self.cfg = cfg; self.cold = []; self.nst = 0
    def stamp(self, k):
        if self.cfg.get("ts"): self.I(f"s_memrealtime s[{84+2*k}:{85+2*k}]")
    def exec_(self, m):
        if m == -1: self.I("s_mov_b64 exec, -1")
        elif m < 2**31: self.I(f"s_mov_b64 exec, {hex(m)}")
        else:
            self.I(f"s_mov_b32 exec_lo, {hex(m & 0xffffffff)}"); self.I(f"s_mov_b32 exec_hi, {hex(m >> 32)}")
    def red_low(self, regs, op="add"):
        for pat in ("quad_perm:[1,0,3,2]", "quad_perm:[2,3,0,1]", "row_half_mirror"):
            for r in regs: self.I(f"v_{op}_f32_dpp v{r}, v{r}, v{r} {pat} {DPPM}")
    def red_up(self, regs, tmps, op="add", do32=True):
        if do32:
            for r, t in zip(regs, tmps): self.I(f"v_permlane32_swap_b32 v{r}, v{t}")
            for r, t in zip(regs, tmps): self.I(f"v_{op}_f32 v{r}, v{r}, v{t}")
        for r, t in zip(regs, tmps): self.I(f"v_permlane16_swap_b32 v{r}, v{t}")
        for r, t in zip(regs, tmps): self.I(f"v_{op}_f32 v{r}, v{r}, v{t}")
        for r in regs: self.I(f"v_{op}_f32_dpp v{r}, v{r}, v{r} row_ror:8 {DPPM}")
    def build_a(self, dst, src):
        for w in range(4): self.I(f"v_and_b32 v{dst+w}, v{src}, v{M[w]}")
    def poll_issue(self, name, reg, soff, mask=-1, voff=vPOLL, imm=0):
        if mask != -1: self.exec_(mask)
        self.vmem(name, f"buffer_load_dwordx4 {r4(reg)}, {voff}, {WS_}, {soff} offen offset:{imm} sc1")
        if mask != -1: self.exec_(-1)
    def poll_check(self, name, reg, soff, mask=-1, voff=vPOLL, imm=0, code=1):
        lab = f"L_{self.role}_{name}"
        self.wait(name)
        if mask != -1: self.exec_(mask)
        self.I(f"{lab}_chk:")
        self.I(f"v_cmp_ne_u32 vcc, {sTAG}, v{reg+3}")
        self.I(f"s_cbranch_vccnz {lab}_retry")
        if mask != -1: self.exec_(-1)
        c = self.cold
        c += [f"{lab}_retry:",
              f"  buffer_load_dwordx4 {r4(reg)}, {voff}, {WS_}, {soff} offen offset:{imm} sc1",
              f"  s_add_u32 {sSPIN}, {sSPIN}, 1",
              f"  s_cmp_gt_u32 {sSPIN}, 0x40000",
              f"  s_cbranch_scc1 L_abort",
              f"  s_waitcnt vmcnt(0)",
              f"  s_branch {lab}_chk"]
    def lds_put(self, addr, accs, stride=256):
        self.exec_(0xff00ff0000ff00ff)
        for l, d in accs: self.I(f"ds_write_b128 {addr}, {r4(d)} offset:{l*stride}")
        self.exec_(-1)
    def red192_publish(self, name, soff):
        for t in range(3): self.I(f"ds_read2_b32 {r2(T[0]+2*t)}, {vRD0} offset0:{t} offset1:{192+t}")
        self.I(f"v_mov_b32 v{P+3}, {sTAG}")
        self.I("s_waitcnt lgkmcnt(0)")
        for t in range(3): self.I(f"v_add_f32 v{P+t}, v{T[0]+2*t}, v{T[0]+2*t+1}")
        self.red_up([P, P+1, P+2], T[0:3])
        self.exec_(0xff)
        self.vmem(name, f"buffer_store_dwordx4 {r4(P)}, {vU16}, {WS_}, {soff} offen sc1")
        self.exec_(-1)
    def transpose_sum(self, n):
        for t in range(n): self.I(f"ds_bpermute_b32 v{T[t]}, {vBP}, v{P+t}")
        self.I("s_waitcnt lgkmcnt(0)")
        self.red_low(T[0:n])

def srd(g, name, nbytes):
    b = int(name[2:name.index(":")])
    g.I(f"s_mov_b32 s{b+2}, {nbytes}"); g.I(f"s_mov_b32 s{b+3}, 0x20000")
def ptr(g, name, off):
    b = int(name[2:name.index(":")])
    g.I(f"s_load_dwordx2 s[{b}:{b+1}], s[0:1], {off}")

def entry(cfg):
    g = G("E", cfg)
    g.stamp(0)
    ptr(g, X_, 0); ptr(g, K_, 8); ptr(g, WS_, 96)
    g.I(f"""
    s_cmp_ge_u32 s2, 256
    s_cbranch_scc1 L_end
    s_and_b32 {sH}, s2, 7
    s_lshl_b32 {sH}, {sH}, 2
    s_bfe_u32 {sRHO}, s2, 0x20003
    s_add_u32 {sH}, {sH}, {sRHO}
    s_lshr_b32 {sC}, s2, 5
    v_lshrrev_b32 v{T[0]}, 6, v0
    v_and_b32 {vU16}, 7, v0
    v_readfirstlane_b32 {sW}, v{T[0]}
    v_lshlrev_b32 {vU16}, 4, {vU16}
    v_bfe_u32 v{T[1]}, v0, 3, 3
    """)
    srd(g, X_, 1280)
    g.I(f"""
    s_movk_i32 s68, 6144
    s_movk_i32 s69, 12288
    s_cmp_ge_u32 s2, 160
    s_cbranch_scc1 L_F
    """)
    return g

def kv_offset(g):
    g.I(f"""
    s_mul_i32 s34, {sH}, 12582912
    s_mul_i32 s35, {sC}, 196608
    s_add_u32 s34, s34, s35
    s_mul_i32 s35, {sW}, 24576
    s_add_u32 s34, s34, s35
    s_add_u32 s34, s34, {28672*384}
    v_mul_u32_u24 {vKV}, 384, v{T[1]}
    v_add3_u32 {vKV}, {vKV}, {vU16}, s34
    s_movk_i32 s70, 18432
    """)
    srd(g, K_, 402653184)

def kv_load(g, n):
    pol = g.cfg.get("pol", "nt")
    if n < 24: reg, sr, name, j = KR[n], K_, f"K{n}", n
    else: reg, sr, name, j = VR[n-24], V_, f"V{n-24}", n-24
    t, l = divmod(j, 3)
    g.vmem(name, f"buffer_load_dwordx4 {r4(reg)}, {vKV}, {sr}, {SO[t//2]} offen offset:{(t%2)*3072 + l*128} {pol}")

def prologue(role, cfg):
    g = G(role, cfg); pol = cfg.get("pol", "nt")
    if role == "A":
        ptr(g, A_, 24); srd(g, A_, 640*12288)
        g.I(f"""
        s_mul_i32 s34, {sC}, {128*12288}
        s_mul_i32 s35, {sH}, 384
        s_add_u32 s34, s34, s35
        v_lshrrev_b32 v{T[2]}, 3, v0
        v_mul_u32_u24 {vA}, 24576, v{T[2]}
        v_add3_u32 {vA}, {vA}, {vU16}, s34
        s_lshl_b32 s35, {sC}, 8
        v_lshl_add_u32 {vX}, v{T[2]}, 2, s35
        s_waitcnt lgkmcnt(0)
        """)
        g.vmem("x", f"buffer_load_dword v{P}, {vX}, {X_}, 0 offen")
        for j in range(6):
            t, l = divmod(j, 3)
            g.vmem(f"A{j}", f"buffer_load_dwordx4 {r4(AR[j])}, {vA}, {A_}, {'s69' if t else '0'} offen offset:{l*128} {pol}")
    else:
        g.I("L_F:")
        g.I("s_load_dwordx4 s[16:19], s[0:1], 48")
        srd(g, A_, 640*3072)
        g.I(f"""
        s_and_b32 s34, s2, 7
        s_mul_i32 {sL}, s34, 3
        s_add_u32 {sL}, {sL}, {sC}
        s_sub_u32 {sL}, {sL}, 5
        s_and_b32 s34, {sW}, 3
        s_mul_i32 s34, s34, 40
        s_mul_i32 s35, {sRHO}, 160
        s_add_u32 s34, s34, s35
        s_lshl_b32 s35, s34, 1
        v_lshl_add_u32 {vX}, v{T[1]}, 3, s35
        v_lshl_add_u32 v{T[3]}, v{T[1]}, 1, s35
        s_mul_i32 s34, s34, 3072
        s_lshl_b32 s35, {sL}, 7
        s_add_u32 s34, s34, s35
        v_mul_u32_u24 v{T[2]}, 3072, v{T[1]}
        v_add_u32 v{T[4]}, s34, {vU16}
        v_lshl_add_u32 {vA}, v{T[2]}, 2, v{T[4]}
        v_add_u32 v{T[2]}, v{T[2]}, v{T[4]}
        s_mov_b32 s35, {32*3072}
        s_cmp_ge_u32 {sW}, 4
        s_waitcnt lgkmcnt(0)
        s_cselect_b32 s44, s18, s16
        s_cselect_b32 s45, s19, s17
        """)
        g.vmem("x0", f"buffer_load_dwordx2 {r2(P)}, {vX}, {X_}, 0 offen")
        g.vmem("x", f"buffer_load_ushort v{P+2}, v{T[3]}, {X_}, 0 offen offset:64")
        for t in range(4):
            g.vmem(f"A{t}", f"buffer_load_dwordx4 {r4(AR[t])}, {vA}, {A_}, {SO[t//2]} offen offset:{(t%2)*3072} {pol}")
        g.vmem("A4", f"buffer_load_dwordx4 {r4(AR[4])}, v{T[2]}, {A_}, s35 offen {pol}")
    kv_offset(g)
    for n in range(cfg["pre"][role]): kv_load(g, n)
    g.I(f"s_load_dword {sTAG}, s[56:57], 0")
    ptr(g, V_, 16); ptr(g, W_, 32 if role == "A" else 64)
    if cfg.get("warm", True):
        g.I("s_mov_b64 exec, 0")
        for w in range(7):
            g.I(f"s_cmp_eq_u32 {sW}, {w}"); g.I(f"s_cbranch_scc1 L_{role}_pad{w}")
        g.I(f"s_branch L_{role}_pad7")
    else:
        g.I(f"s_branch L_{role}_main")
    return g

def main(g):
    role, cfg = g.role, g.cfg
    C = cfg["C"]; pre = cfg["pre"][role]; pol = cfg.get("pol", "nt")
    g.I(f"L_{role}_main:")
    g.I("s_mov_b64 exec, -1")
    srd(g, V_, 402653184); srd(g, WS_, WS_BYTES); srd(g, W_, 6144*1280 if role == "A" else 1536*1280)
    g.I(f"""
    s_mov_b32 {sSPIN}, 0
    s_mov_b32 {sCS}, {f32(CS)}
    v_and_b32 v{T[0]}, 1, v0
    v_lshlrev_b32 v{T[0]}, 4, v{T[0]}
    v_mov_b32 v{T[2]}, 0xffff
    v_lshlrev_b32 v{T[2]}, v{T[0]}, v{T[2]}
    v_bfe_u32 v{T[0]}, v0, 1, 2
    """)
    for w in range(4):
        g.I(f"v_cmp_eq_u32 vcc, {w}, v{T[0]}"); g.I(f"v_cndmask_b32 v{M[w]}, 0, v{T[2]}, vcc")
    g.I(f"""
    v_lshl_add_u32 {vPOLL}, v{T[1]}, 10, {vU16}
    v_lshlrev_b32 {vBP}, 1, {vU16}
    v_lshl_add_u32 {vBP}, v{T[1]}, 2, {vBP}
    v_bfe_u32 v{T[0]}, v0, 4, 1
    v_lshlrev_b32 v{T[0]}, 4, v{T[0]}
    v_lshl_add_u32 v{T[0]}, {vU16}, 1, v{T[0]}
    v_bfe_u32 v{T[2]}, v0, 5, 1
    s_mul_i32 s34, {sW}, {392*4}
    v_mul_u32_u24 {vWR0}, 768, v{T[2]}
    v_add3_u32 {vWR0}, {vWR0}, v{T[0]}, s34
    s_mul_i32 s34, {sW}, 96
    v_mul_u32_u24 {vRD0}, {392*4}, v{T[1]}
    v_and_b32 v{T[3]}, 7, v0
    v_mul_u32_u24 v{T[3]}, 12, v{T[3]}
    v_add3_u32 {vRD0}, {vRD0}, v{T[3]}, s34
    s_lshl_b32 s34, {sW}, 7
    s_lshl_b32 s35, {sH}, 13
    s_add_u32 s35, s35, s34
    s_add_u32 {sQP}, s35, {QS}
    s_add_u32 {sP2}, s35, {OS}
    s_lshl_b32 s35, {sC}, 10
    s_add_u32 {sPUB1}, {sQP}, s35
    s_add_u32 {sOP}, {sP2}, s35
    s_lshl_b32 s35, {sH}, 10
    s_add_u32 {sMLQ}, s35, {ML}
    s_lshl_b32 s35, {sC}, 7
    s_add_u32 {sMLP}, {sMLQ}, s35
    s_lshl_b32 s35, {sW}, 4
    s_add_u32 {sMLP}, {sMLP}, s35
    """)
    if role == "F":
        g.I(f"""
        s_lshl_b32 s35, {sL}, 12
        s_add_u32 s35, s35, s34
        s_add_u32 {sP2}, s35, {HS}
        s_lshl_b32 s35, {sRHO}, 10
        s_add_u32 {sPUB1}, {sP2}, s35
        s_mul_i32 s34, {sW}, {136*4}
        s_add_u32 s34, s34, {R1}
        v_lshlrev_b32 v{Q[0]}, 8, v{T[2]}
        v_add3_u32 v{Q[0]}, v{Q[0]}, v{T[0]}, s34
        s_lshl_b32 s34, {sW}, 5
        s_add_u32 s34, s34, {R1}
        v_mul_u32_u24 v{Q[0]+1}, {136*4}, v{T[1]}
        v_lshrrev_b32 v{T[3]}, 2, {vU16}
        v_add3_u32 v{Q[0]+1}, v{Q[0]+1}, v{T[3]}, s34
        """)
    for t in range(8): g.I(f"v_mov_b32 v{S[t]}, 0")
    g.I("s_mov_b32 s34, 0x01000100"); g.I("s_mov_b32 s35, 0x03020302")
    g.wait("x", lgkm=True)
    g.I(f"s_add_u32 {sTAG}, {sTAG}, 0x9e3779b9")
    g.stamp(1)
    n = pre
    if role == "A":
        for t in range(2):
            g.I(f"v_perm_b32 v{T[0]}, v{P}, v{P}, s{34+t}"); g.build_a(AB[t], T[0])
        for j in range(6):
            t, l = divmod(j, 3)
            g.wait(f"A{j}"); kv_load(g, n); n += 1
            g.I(f"v_mfma_f32_16x16x32_bf16 {r4(D[l])}, {r4(AB[t])}, {r4(AR[j])}, {r4(D[l]) if t else 0}")
        g.lds_put(vWR0, list(enumerate(D)))
        g.I("s_waitcnt lgkmcnt(0)"); g.I("s_barrier")
        g.red192_publish("pub1", sPUB1)
    else:
        for t in range(5):
            g.I(f"v_perm_b32 v{T[0]}, v{P+t//2}, v{P+t//2}, s{34+t%2}"); g.build_a(AB[t%2], T[0])
            g.wait(f"A{t}"); kv_load(g, n); n += 1
            g.I(f"v_mfma_f32_16x16x32_bf16 {r4(D[0])}, {r4(AB[t%2])}, {r4(AR[t])}, {r4(D[0]) if t else 0}")
        g.lds_put(f"v{Q[0]}", [(0, D[0])])
        g.I("s_waitcnt lgkmcnt(0)"); g.I("s_barrier")
        g.I(f"ds_read2_b32 {r2(T[0])}, v{Q[0]+1} offset0:0 offset1:64")
        g.I(f"v_mov_b32 v{P+3}, {sTAG}"); g.I(f"v_mov_b32 v{P+2}, 0")
        g.I("s_waitcnt lgkmcnt(0)")
        g.I(f"v_add_f32 v{P}, v{T[0]}, v{T[1]}")
        g.red_up([P], [T[0]], do32=False)
        g.I(f"v_permlane32_swap_b32 v{P}, v{P+1}")
        g.exec_(0xff)
        g.vmem("pub1", f"buffer_store_dwordx4 {r4(P)}, {vU16}, {WS_}, {sPUB1} offen sc1")
        g.exec_(-1)
    g.stamp(2)
    nW = 6 if role == "A" else 3
    st = dict(q=False, qi=False, kt=0, sm=False, vj=0, mli=False, ml=False, hi=False, h=(role == "A"), addr=False, put=0)
    QP, MLP, HP = cfg["QP"], cfg["MLP"], cfg["HP"]
    def zero_poll():
        for t in range(3): g.I(f"v_mov_b32 v{P+t}, 0")
    def consume_q():
        g.poll_check("qpoll", P, sQP, mask=0xffffffffff)
        g.transpose_sum(3)
        g.I(f"""
        v_cvt_pk_bf16_f32 v{T[0]}, v{T[0]}, v{T[1]}
        v_cvt_pk_bf16_f32 v{T[1]}, v{T[2]}, v{T[2]}
        v_lshrrev_b32 v{T[2]}, 3, v0
        v_mul_u32_u24 v{T[2]}, 6, v{T[2]}
        """)
        g.exec_(0x0101010101010101)
        g.I(f"""
        ds_write_b16 v{T[2]}, v{T[0]} offset:{QL}
        ds_write_b16_d16_hi v{T[2]}, v{T[0]} offset:{QL+2}
        ds_write_b16 v{T[2]}, v{T[1]} offset:{QL+4}
        """)
        g.exec_(-1)
        g.I("s_waitcnt lgkmcnt(0)"); g.I("s_barrier")
        for l in range(3): g.I(f"ds_read_b128 {r4(Q[l])}, {vU16} offset:{QL + l*128}")
        g.I("s_waitcnt lgkmcnt(0)")
        g.stamp(3)
    def k_octets(ts):
        for l in range(3):
            for e in range(4):
                for t in ts: g.I(f"v_dot2c_f32_bf16 v{S[t]}, v{KR[3*t+l]+e}, v{Q[l]+e}")
        g.red_low([S[t] for t in ts])
    def softmax():
        if cfg.get("mimic", False):
            pass
        g.I(f"""
        v_max3_f32 v{T[0]}, v{S[0]}, v{S[1]}, v{S[2]}
        v_max3_f32 v{T[1]}, v{S[3]}, v{S[4]}, v{S[5]}
        v_max3_f32 v{T[0]}, v{T[0]}, v{S[6]}, v{S[7]}
        v_max_f32 v{T[0]}, v{T[0]}, v{T[1]}
        """)
        g.red_up([T[0]], [T[1]], op="max")
        g.I(f"""
        v_mul_f32 v{P}, {sCS}, v{T[0]}
        v_readfirstlane_b32 s34, v{P}
        v_mov_b32 {vF}, s34
        """)
        for t in range(8): g.I(f"v_fma_f32 v{S[t]}, v{S[t]}, {sCS}, -{vF}")
        for t in range(8): g.I(f"v_exp_f32 v{S[t]}, v{S[t]}")
        g.I(f"""
        v_add_f32 v{T[0]}, v{S[0]}, v{S[1]}
        v_add_f32 v{T[1]}, v{S[2]}, v{S[3]}
        v_add_f32 v{T[2]}, v{S[4]}, v{S[5]}
        v_add_f32 v{T[3]}, v{S[6]}, v{S[7]}
        v_add_f32 v{T[0]}, v{T[0]}, v{T[1]}
        v_add_f32 v{T[2]}, v{T[2]}, v{T[3]}
        v_add_f32 v{P+1}, v{T[0]}, v{T[2]}
        v_mov_b32 v{P+2}, 0
        v_mov_b32 v{P+3}, {sTAG}
        """)
        g.red_up([P+1], [T[1]])
        g.exec_(1)
        g.vmem("pubml", f"buffer_store_dwordx4 {r4(P)}, {vU16}, {WS_}, {sMLP} offen sc1")
        g.exec_(-1)
        for t in range(8): g.I(f"v_cvt_pk_bf16_f32 v{S[t]}, v{S[t]}, v{S[t]}")
        g.build_a(AB[0], S[0])
        g.stamp(4)
    vML = "v91"
    def tail_addr():
        g.I(f"""
        v_and_b32 {vML}, 63, v0
        v_lshlrev_b32 {vML}, 4, {vML}
        v_bfe_u32 v{T[1]}, v0, 3, 3
        v_bfe_u32 v{T[0]}, v0, 4, 1
        v_lshlrev_b32 v{T[0]}, 4, v{T[0]}
        v_lshl_add_u32 v{T[0]}, {vU16}, 1, v{T[0]}
        v_bfe_u32 v{T[2]}, v0, 5, 1
        v_lshrrev_b32 v{T[3]}, 1, {vU16}
        """)
        if role == "A":
            g.I(f"""
            s_mul_i32 s34, {sH}, 192
            s_mul_i32 s35, {sW}, 24
            s_add_u32 s34, s34, s35
            s_mul_i32 s34, s34, 1280
            s_lshl_b32 s35, {sC}, 8
            s_add_u32 s34, s34, s35
            v_mul_u32_u24 {vW}, 3840, v{T[1]}
            v_add3_u32 {vW}, {vW}, {vU16}, s34
            s_mul_i32 s34, {sW}, {272*4}
            s_add_u32 s34, s34, {R1}
            v_lshlrev_b32 {vWR1}, 9, v{T[2]}
            v_add3_u32 {vWR1}, {vWR1}, v{T[0]}, s34
            s_lshl_b32 s34, {sW}, 6
            s_add_u32 s34, s34, {R1}
            v_mul_u32_u24 {vRD1}, {272*4}, v{T[1]}
            v_add3_u32 {vRD1}, {vRD1}, v{T[3]}, s34
            s_lshl_b32 s34, {sC}, 3
            s_add_u32 s34, s34, {sW}
            s_lshl_b32 s34, s34, 13
            s_lshl_b32 s35, {sH}, 7
            s_add_u32 s34, s34, s35
            s_add_u32 {sFP}, s34, {FS}
            """)
        else:
            g.I(f"""
            s_mul_i32 {sFP}, {sRHO}, 12
            s_min_u32 {sFP}, {sFP}, 32
            s_lshl_b32 s34, {sL}, 6
            s_lshl_b32 s35, {sW}, 3
            s_add_u32 s34, s34, s35
            s_mul_i32 s34, s34, 1280
            s_lshl_b32 s35, {sFP}, 5
            s_add_u32 s34, s34, s35
            v_mul_u32_u24 {vW}, 1280, v{T[1]}
            v_add3_u32 {vW}, {vW}, {vU16}, s34
            s_cmp_ge_u32 {sRHO}, 2
            s_cselect_b32 {sW3}, 0x1000000, 0
            v_add_u32 v{AB3[1]}, {sW3}, {vW}
            s_mul_i32 s34, {sW}, {400*4}
            s_add_u32 s34, s34, {R2}
            v_mul_u32_u24 {vWR1}, 768, v{T[2]}
            v_add3_u32 {vWR1}, {vWR1}, v{T[0]}, s34
            s_lshl_b32 s34, {sW}, 6
            s_add_u32 s34, s34, {R2}
            v_mul_u32_u24 {vRD1}, {400*4}, v{T[1]}
            v_add3_u32 {vRD1}, {vRD1}, v{T[3]}, s34
            s_add_u32 s34, {sFP}, {sW}
            s_lshl_b32 s34, s34, 13
            s_lshl_b32 s35, {sL}, 7
            s_add_u32 s34, s34, s35
            s_add_u32 {sFP}, s34, {FS + 4096}
            """)
    def consume_ml():
        g.poll_check("mlpoll", P, sMLQ, voff=vML)
        g.I(f"v_mov_b32 v{T[0]}, v{P}")
        g.red_low([T[0]], op="max"); g.red_up([T[0]], [T[1]], op="max")
        g.I(f"""
        v_readfirstlane_b32 s34, v{T[0]}
        v_subrev_f32 v{P}, s34, v{P}
        v_subrev_f32 {vF}, s34, {vF}
        v_exp_f32 v{P}, v{P}
        v_exp_f32 {vF}, {vF}
        v_mul_f32 v{T[0]}, v{P}, v{P+1}
        """)
        g.red_low([T[0]]); g.red_up([T[0]], [T[1]])
        g.I(f"""
        v_rcp_f32 v{T[0]}, v{T[0]}
        v_readfirstlane_b32 s34, v{T[0]}
        v_mul_f32 {vF}, s34, {vF}
        """)
    def consume_h():
        g.poll_check("hpoll", P, sP2, mask=0xffffffff)
        g.transpose_sum(2)
        g.I(f"""
        v_cvt_pk_bf16_f32 v{T[0]}, v{T[0]}, v{T[1]}
        v_and_b32 v{T[1]}, 0xffff0000, v{T[0]}
        v_lshlrev_b32 v{T[0]}, 16, v{T[0]}
        v_mul_f32 v{T[2]}, {f32(-LOG2E)}, v{T[0]}
        v_exp_f32 v{T[2]}, v{T[2]}
        v_add_f32 v{T[2]}, 1.0, v{T[2]}
        v_rcp_f32 v{T[2]}, v{T[2]}
        v_mul_f32 v{T[0]}, v{T[0]}, v{T[2]}
        v_cvt_pk_bf16_f32 v{T[0]}, v{T[0]}, v{T[0]}
        v_lshlrev_b32 v{T[0]}, 16, v{T[0]}
        v_mul_f32 v{T[0]}, v{T[0]}, v{T[1]}
        v_cvt_pk_bf16_f32 v{T[0]}, v{T[0]}, v{T[0]}
        """)
        g.build_a(AB3[0], T[0])
    def v_mfma(j):
        t, l = divmod(j, 3)
        g.I(f"v_mfma_f32_16x16x32_bf16 {r4(D[l])}, {r4(AB[t%2])}, {r4(VR[j])}, {r4(D[l]) if t else 0}")
        if l == 0 and t < 7: g.build_a(AB[(t+1)%2], S[t+1])
    def put_d(l):
        for e in range(4): g.I(f"v_mul_f32 v{D[l]+e}, v{D[l]+e}, {vF}")
        g.lds_put(vWR0, [(l, D[l])])
    def work(n):
        landed = lambda x: x not in g.vm
        if not st["qi"] and n > QP:
            zero_poll(); g.poll_issue("qpoll", P, sQP, mask=0xffffffffff); st["qi"] = True
        elif st["qi"] and not st["q"] and landed("qpoll"):
            consume_q(); st["q"] = True
        elif st["q"] and st["kt"] < 8:
            ts = [t for t in range(st["kt"], min(st["kt"]+2, 8)) if 3*t+2 < n and landed(f"K{3*t+2}")]
            if ts: k_octets(ts); st["kt"] = ts[-1] + 1
        if st["kt"] == 8 and not st["sm"]:
            softmax(); st["sm"] = True
        elif st["sm"] and not st["addr"]:
            tail_addr(); st["addr"] = True
        elif st["addr"] and not st["h"] and not st["hi"] and n > HP and landed("pubml"):
            zero_poll(); g.poll_issue("hpoll", P, sP2, mask=0xffffffff); st["hi"] = True
        elif st["hi"] and not st["h"] and landed("hpoll"):
            consume_h(); st["h"] = True
        if st["addr"] and st["h"] and not st["mli"] and n > MLP and landed("pubml"):
            g.poll_issue("mlpoll", P, sMLQ, voff=vML); st["mli"] = True
        elif st["mli"] and not st["ml"] and landed("mlpoll"):
            consume_ml(); st["ml"] = True
        if st["sm"]:
            while st["vj"] < 24 and st["vj"] + 24 < n and landed(f"V{st['vj']}"):
                v_mfma(st["vj"]); st["vj"] += 1
    def w_load(j):
        if role == "A":
            t, l = divmod(j, 2)
            g.vmem(f"W{j}", f"buffer_load_dwordx4 {r4(WR[j])}, {vW}, {W_}, 0 offen offset:{t*1280 + l*128} {pol}")
        else:
            g.vmem(f"W{j}", f"buffer_load_dwordx4 {r4(WR[j])}, {('v%d' % AB3[1]) if j == 2 else vW}, {W_}, 0 offen offset:{j*128} {pol}")
    while n < 48 + nW:
        g.cap((C if n < 48 else cfg.get("CW", C)) - 1)
        if n < 48: kv_load(g, n)
        else:
            assert st["addr"]
            w_load(n - 48)
        n += 1
        work(n)
    assert st["mli"] and st["h"], st
    if not st["ml"]:
        consume_ml(); st["ml"] = True
    while st["vj"] < 24:
        j = st["vj"]
        g.wait(f"V{j}"); v_mfma(j); st["vj"] += 1
        if j == 22: put_d(0); st["put"] = 1
    g.stamp(5)
    for l in range(st["put"], 3): put_d(l)
    g.I("s_waitcnt lgkmcnt(0)"); g.I("s_barrier")
    g.red192_publish("pubo", sOP)
    if role == "A":
        PP = AB3[2] + 4
        g.wait(f"W{cfg.get('OPW', 3)}")
        g.I("s_nop 1")
        g.poll_issue("opoll", P, sP2)
        g.poll_check("opoll", P, sP2)
        g.stamp(6)
        g.transpose_sum(3)
        for t in range(3): g.I(f"v_cvt_pk_bf16_f32 v{T[t]}, v{T[t]}, v{T[t]}")
        for t in range(3):
            g.build_a(AB3[t], T[t])
        for t in range(3):
            for l in range(2):
                g.I(f"v_mfma_f32_16x16x32_bf16 {r4(D[l])}, {r4(AB3[t])}, {r4(WR[2*t+l])}, {r4(D[l]) if t else 0}")
        g.I(f"v_mov_b32 v{P+3}, {sTAG}")
        g.lds_put(vWR1, [(0, D[0]), (1, D[1])])
        g.I("s_waitcnt lgkmcnt(0)"); g.I("s_barrier")
        g.I(f"ds_read2_b64 {r4(AB3[0])}, {vRD1} offset0:0 offset1:64")
        g.I("s_waitcnt lgkmcnt(0)")
        g.I(f"v_add_f32 v{P}, v{AB3[0]}, v{AB3[0]+2}"); g.I(f"v_add_f32 v{P+1}, v{AB3[0]+1}, v{AB3[0]+3}")
        g.red_up([P, P+1], T[0:2])
        g.exec_(0xff)
        g.vmem("pubf", f"buffer_store_dwordx4 {r4(P)}, {vU16}, {WS_}, {sFP} offen sc1")
        g.stamp(7)
        g.I("s_branch L_fin")
    else:
        for l in range(3):
            g.wait(f"W{l}")
            g.I(f"v_mfma_f32_16x16x32_bf16 {r4(D[l])}, {r4(AB3[0])}, {r4(WR[l])}, 0")
        g.lds_put(vWR1, list(enumerate(D)))
        g.I("s_waitcnt lgkmcnt(0)"); g.I("s_barrier")
        g.I(f"ds_read2_b64 {r4(AB3[0])}, {vRD1} offset0:0 offset1:96")
        g.I(f"ds_read2_b64 {r4(AB3[1])}, {vRD1} offset0:64 offset1:160")
        PB = AB3[2]
        g.I(f"v_mov_b32 v{PB+3}, {sTAG}"); g.I(f"v_mov_b32 v{PB+2}, 0")
        g.I("s_waitcnt lgkmcnt(0)")
        g.I(f"v_add_f32 v{P}, v{AB3[0]}, v{AB3[0]+2}"); g.I(f"v_add_f32 v{P+1}, v{AB3[0]+1}, v{AB3[0]+3}")
        g.I(f"v_add_f32 v{PB}, v{AB3[1]}, v{AB3[1]+2}"); g.I(f"v_add_f32 v{PB+1}, v{AB3[1]+1}, v{AB3[1]+3}")
        g.red_up([P, P+1, PB, PB+1], T[0:4])
        g.exec_(0xff)
        g.I(f"buffer_store_dwordx4 {r4(P)}, {vU16}, {WS_}, {sFP} offen sc1")
        g.stamp(6)
        g.I(f"""
        s_cmp_ge_u32 {sRHO}, 2
        s_cbranch_scc1 L_F_red
        s_cmp_ge_u32 {sW}, 4
        s_cbranch_scc1 L_fin7
        s_add_u32 {sFP}, {sFP}, {8*8192}
        buffer_store_dwordx4 {r4(PB)}, {vU16}, {WS_}, {sFP} offen sc1
        s_branch L_fin7
        L_F_red:
        s_cmp_lg_u32 {sW}, 0
        s_cbranch_scc1 L_fin7
        s_lshl_b32 {sRED}, {sL}, 1
        s_add_u32 {sRED}, {sRED}, {sRHO}
        s_sub_u32 {sRED}, {sRED}, 2
        s_cmp_ge_u32 {sRED}, 40
        s_cbranch_scc1 L_fin7
        """)
        reducer(g)
    return g

def reducer(g):
    g.vm = []
    vML = "v91"
    B = [104, 108, 112]; Aa = [116, 120, 124, 128]
    XX, GG = 132, 140
    ptr(g, O_, 80); ptr(g, G_, 72)
    g.exec_(-1)
    srd(g, O_, 1280); srd(g, G_, 1280)
    g.I(f"""
    s_lshl_b32 s34, {sRED}, 13
    s_add_u32 s34, s34, {FS}
    s_add_u32 s35, s34, 4096
    v_lshrrev_b32 v{T[0]}, 2, {vML}
    """)
    g.vmem("x4", f"buffer_load_dwordx4 {r4(XX)}, {vML}, {X_}, 0 offen")
    g.vmem("x1", f"buffer_load_dword v{XX+4}, v{T[0]}, {X_}, 0 offen offset:1024")
    g.I("s_waitcnt lgkmcnt(0)")
    g.vmem("g4", f"buffer_load_dwordx4 {r4(GG)}, {vML}, {G_}, 0 offen")
    g.vmem("g1", f"buffer_load_dword v{GG+4}, v{T[0]}, {G_}, 0 offen offset:1024")
    g.vmem("o1", f"buffer_load_dword v{GG+5}, v{T[0]}, {O_}, 0 offen")
    for k in range(3): g.poll_issue(f"b{k}", B[k], "s35", voff=vML, imm=k*1024)
    g.wait("g1")
    g.I(f"v_mov_b32 v{T[5]}, 0"); g.I(f"v_mov_b32 v{T[4]}, 0x3f803f80")
    for k in range(5):
        g.I(f"""
        v_lshlrev_b32 v{T[1]}, 16, v{XX+k}
        v_lshlrev_b32 v{T[2]}, 16, v{GG+k}
        v_and_b32 v{XX+k}, 0xffff0000, v{XX+k}
        v_and_b32 v{GG+k}, 0xffff0000, v{GG+k}
        v_mul_f32 v{T[1]}, v{T[1]}, v{T[2]}
        v_mul_f32 v{T[2]}, v{XX+k}, v{GG+k}
        v_cvt_pk_bf16_f32 v{T[1]}, v{T[1]}, v{T[2]}
        v_lshlrev_b32 v{T[2]}, 16, v{T[1]}
        v_and_b32 v{T[1]}, 0xffff0000, v{T[1]}
        v_add_f32 v{T[5]}, v{T[5]}, v{T[2]}
        v_add_f32 v{T[5]}, v{T[5]}, v{T[1]}
        """)
    g.red_low([T[5]]); g.red_up([T[5]], [T[1]])
    g.I(f"""
    v_cvt_pk_bf16_f32 v{T[5]}, v{T[5]}, v{T[5]}
    v_lshlrev_b32 v{T[5]}, 16, v{T[5]}
    v_mul_f32 v{T[5]}, {f32(-LOG2E)}, v{T[5]}
    v_exp_f32 v{T[5]}, v{T[5]}
    v_add_f32 v{T[5]}, 1.0, v{T[5]}
    v_rcp_f32 v{T[5]}, v{T[5]}
    v_cvt_pk_bf16_f32 v{T[5]}, v{T[5]}, v{T[5]}
    v_lshlrev_b32 v{T[5]}, 16, v{T[5]}
    v_sub_f32 v{T[4]}, 1.0, v{T[5]}
    v_cvt_pk_bf16_f32 v{T[4]}, v{T[4]}, v{T[4]}
    v_lshlrev_b32 v{T[4]}, 16, v{T[4]}
    """)
    for k in range(3): g.poll_check(f"b{k}", B[k], "s35", voff=vML, imm=k*1024)
    for k in range(4): g.poll_issue(f"a{k}", Aa[k], "s34", voff=vML, imm=k*1024)
    for e in range(2):
        g.I(f"v_add_f32 v{B[0]+e}, v{B[0]+e}, v{B[1]+e}");
    for e in range(2):
        g.I(f"v_add_f32 v{B[0]+e}, v{B[0]+e}, v{B[2]+e}")
    g.red_up([B[0], B[0]+1], T[1:3])
    g.I(f"""
    v_cvt_pk_bf16_f32 v{T[1]}, v{B[0]}, v{B[0]+1}
    v_lshlrev_b32 v{B[0]}, 16, v{T[1]}
    v_and_b32 v{B[0]+1}, 0xffff0000, v{T[1]}
    v_mul_f32 v{B[0]}, v{B[0]}, v{T[4]}
    v_mul_f32 v{B[0]+1}, v{B[0]+1}, v{T[4]}
    v_cvt_pk_bf16_f32 v{T[1]}, v{B[0]}, v{B[0]+1}
    v_lshlrev_b32 v{B[0]}, 16, v{T[1]}
    v_and_b32 v{B[0]+1}, 0xffff0000, v{T[1]}
    s_lshl_b32 s35, {sRED}, 5
    """)
    g.I("L_F_achk:")
    g.I("s_waitcnt vmcnt(0)")
    g.I(f"""
    v_cmp_ne_u32 s[4:5], {sTAG}, v{Aa[0]+3}
    v_cmp_ne_u32 s[6:7], {sTAG}, v{Aa[1]+3}
    v_cmp_ne_u32 s[8:9], {sTAG}, v{Aa[2]+3}
    v_cmp_ne_u32 vcc, {sTAG}, v{Aa[3]+3}
    v_add_f32 v{T[1]}, v{Aa[0]}, v{Aa[1]}
    v_add_f32 v{T[2]}, v{Aa[0]+1}, v{Aa[1]+1}
    s_or_b64 s[4:5], s[4:5], s[6:7]
    s_or_b64 s[8:9], s[8:9], vcc
    s_or_b64 s[4:5], s[4:5], s[8:9]
    s_cbranch_scc1 L_F_aretry
    v_add_f32 v{Aa[2]}, v{Aa[2]}, v{Aa[3]}
    v_add_f32 v{Aa[2]+1}, v{Aa[2]+1}, v{Aa[3]+1}
    v_add_f32 v{T[1]}, v{T[1]}, v{Aa[2]}
    v_add_f32 v{T[2]}, v{T[2]}, v{Aa[2]+1}
    """)
    g.cold.append("L_F_aretry:")
    for k in range(4): g.cold.append(f"  buffer_load_dwordx4 {r4(Aa[k])}, {vML}, {WS_}, s34 offen offset:{k*1024} sc1")
    g.cold += [f"  s_add_u32 {sSPIN}, {sSPIN}, 1", f"  s_cmp_gt_u32 {sSPIN}, 0x40000", "  s_cbranch_scc1 L_abort", "  s_branch L_F_achk"]
    g.red_up([T[1], T[2]], [Aa[0], Aa[1]])
    osc = g.cfg.get("outpol", "sc1")
    g.I(f"""
    v_cvt_pk_bf16_f32 v{T[1]}, v{T[1]}, v{T[2]}
    v_and_b32 v{T[2]}, 0xffff0000, v{T[1]}
    v_lshlrev_b32 v{T[1]}, 16, v{T[1]}
    v_mul_f32 v{T[1]}, v{T[1]}, v{T[5]}
    v_mul_f32 v{T[2]}, v{T[2]}, v{T[5]}
    v_cvt_pk_bf16_f32 v{T[1]}, v{T[1]}, v{T[2]}
    v_and_b32 v{T[2]}, 0xffff0000, v{T[1]}
    v_lshlrev_b32 v{T[1]}, 16, v{T[1]}
    v_add_f32 v{T[1]}, v{T[1]}, v{B[0]}
    v_add_f32 v{T[2]}, v{T[2]}, v{B[0]+1}
    v_cvt_pk_bf16_f32 v{T[1]}, v{T[1]}, v{T[2]}
    s_mov_b64 exec, 0xff
    buffer_store_dword v{T[1]}, v{T[0]}, {O_}, s35 offen {osc}
    s_cmp_lg_u32 {sRED}, 0
    s_cbranch_scc1 L_fin7
    v_mov_b32 v{T[2]}, {sTAG}
    s_mov_b64 exec, 1
    buffer_store_dword v{T[2]}, v{T[0]}, {WS_}, 0 offen sc1
    """)
    g.I("s_branch L_fin7")

def isize(t):
    i = Ins(t)
    if not i.op: return 0
    op = i.op; body = t.split(";")[0]
    if op.startswith(("buffer_", "global_", "ds_", "s_load", "s_memreal", "v_mfma")) or "_dpp" in op: return 8
    if op.startswith(("v_add3", "v_lshl_add", "v_bfe", "v_perm_b32", "v_fma_", "v_max3", "v_cvt_pk", "v_mad")): return 8
    import re
    lit = re.search(r"[ ,](0x[0-9a-f]+|\d+)\s*(,|$)", body)
    if lit and not op.startswith(("s_waitcnt", "s_nop", "s_movk")):
        v = int(lit.group(1), 0)
        if v > 64: return 8
    return 4

def add_pads(lines, role, npad=16):
    total = sum(isize(t) for t in lines)
    out = []; acc = 0; k = 0
    for t in lines:
        if k < npad and acc >= (k + 0.5) * total / npad and Ins(t).op:
            nxt = f"L_{role}_pad{k+8}" if k < npad - 8 else f"L_{role}_main"
            out.append(f"L_{role}_pad{k}:"); out.append(f"  s_cbranch_execz {nxt}")
            k += 1
        out.append(t); acc += isize(t)
    assert k == npad
    return out

def gen(path, **kw):
    cfg = dict(C=6, pre=dict(A=0, F=1), QP=16, MLP=39, HP=30)
    cfg.update(kw)
    e = entry(cfg)
    L = list(e.L)
    mains = []
    for role in "AF":
        g = prologue(role, cfg)
        L += g.L; g.L = []
        main(g)
        body = g.L + g.cold
        body = fix_hazards(body)
        if cfg.get("warm", True): body = add_pads(body, role)
        mains += body
    L = fix_hazards(L) + mains
    if not cfg.get("ts"):
        L = ["  s_endpgm" if l.strip() in ("s_branch L_fin", "s_branch L_fin7") else l for l in L]
    fin = ["L_fin7:"]
    if cfg.get("ts"): fin.append("  s_memrealtime s[98:99]")
    fin.append("L_fin:")
    if cfg.get("ts"):
        fin += ["  s_waitcnt lgkmcnt(0)", "  s_mov_b64 exec, 1", f"  s_lshl_b32 s34, s2, 3", f"  s_add_u32 s34, s34, {sW}", "  s_lshl_b32 s34, s34, 6",
                "  s_add_u32 s56, s56, 0x10000000", "  s_addc_u32 s57, s57, 0", "  v_mov_b32 v1, s34"]
        for j in range(16): fin.append(f"  v_mov_b32 v{8+j}, s{84+j}")
        for j in range(4): fin.append(f"  global_store_dwordx4 v1, v[{8+4*j}:{11+4*j}], s[56:57] offset:{16*j} sc1")
    fin += ["L_end:", "  s_endpgm", "L_abort:", "  s_endpgm"]
    txt = HDR + f"; @launch grid=(256,1,1) block=(512,1,1) lds={LDS_BYTES}\n"
    txt += '.amdgcn_target "amdgcn-amd-amdhsa--gfx950"\n.text\n' + f".globl {KN}_kernel\n.p2align 8\n.type {KN}_kernel,@function\n{KN}_kernel:\n"
    txt += "\n".join(L + fin) + "\n"
    txt += f""".section .rodata,"a"
.p2align 6
.amdhsa_kernel {KN}_kernel
  .amdhsa_next_free_vgpr 256
  .amdhsa_next_free_sgpr 102
  .amdhsa_accum_offset 256
  .amdhsa_group_segment_fixed_size 0
  .amdhsa_kernarg_size 104
  .amdhsa_user_sgpr_count 2
  .amdhsa_user_sgpr_kernarg_segment_ptr 1
  .amdhsa_system_sgpr_workgroup_id_x 1
.end_amdhsa_kernel
"""
    open(path, "w").write(txt)

if __name__ == "__main__":
    gen("k_base.s")
    gen("k_base_ts.s", ts=True)
```

```python
import sys, math, struct
from asmlib import Prog, fix_hazards, Ins
KN = "gated_mix__sliding_block_cached__glu_gated_swiglu__decode"
HDR = open("cdna_kernels/" + KN + ".s.ref").read().split("; Override launch")[0]

def f32(x): return "0x%08x" % struct.unpack("<I", struct.pack("<f", x))[0]
LOG2E = 1.4426950408889634
CS = LOG2E / math.sqrt(192.0)

QS, HS, ML, OS, FS = 0x1000, 0x50000, 0x70000, 0x80000, 0xC0000
WS_BYTES = 0x110000
R0, R1, R2, QL = 0, 12544, 12544 + 8704, 12544 + 8704 + 12800
LDS_BYTES = QL + 384
sH, sC, sW, sTAG = "s30", "s31", "s32", "s33"
K_, V_, A_, W_, X_, WS_, O_, G_ = "s[36:39]", "s[40:43]", "s[44:47]", "s[48:51]", "s[52:55]", "s[56:59]", "s[60:63]", "s[64:67]"
SO = ["0", "s68", "s69", "s70"]
sPUB1, sQP, sMLP, sMLQ, sOP, sP2, sFP, sRED, sSPIN, sCS, sRHO, sL, sW3 = ["s%d" % i for i in range(71, 84)]
vKV, vA, vX = "v1", "v2", "v3"
M = [4, 5, 6, 7]
AB = [8, 12]
D = [16, 20, 24]
Q = [28, 32, 36]
S = list(range(40, 48))
P = 48
vWR0, vRD0, vU16, vPOLL, vBP, vF = "v52", "v53", "v54", "v55", "v56", "v57"
T = list(range(58, 64))
KR = [64 + 4*i for i in range(24)]
VR = [160 + 4*i for i in range(24)]
AR = VR[18:24]
WR = KR[0:6]
vW, vWR1, vRD1 = "v88", "v89", "v90"
AB3 = [92, 96, 100]
def r4(b): return f"v[{b}:{b+3}]"
def r2(b): return f"v[{b}:{b+1}]"
DPPM = "row_mask:0xf bank_mask:0xf"

class G(Prog):
    def __init__(self, role, cfg):
        super().__init__()
        self.role = role; self.cfg = cfg; self.cold = []; self.nst = 0
    def stamp(self, name):
        ts = self.cfg.get("ts")
        if ts and name in ts:
            k = ts.index(name)
            self.I(f"s_memrealtime s[{84+2*k}:{85+2*k}]")
    def exec_(self, m):
        if m == -1: self.I("s_mov_b64 exec, -1")
        elif m < 2**31: self.I(f"s_mov_b64 exec, {hex(m)}")
        else:
            self.I(f"s_mov_b32 exec_lo, {hex(m & 0xffffffff)}"); self.I(f"s_mov_b32 exec_hi, {hex(m >> 32)}")
    def red_low(self, regs, op="add"):
        for pat in ("quad_perm:[1,0,3,2]", "quad_perm:[2,3,0,1]", "row_half_mirror"):
            for r in regs: self.I(f"v_{op}_f32_dpp v{r}, v{r}, v{r} {pat} {DPPM}")
    def red_up(self, regs, tmps, op="add", do32=True):
        if do32:
            for r, t in zip(regs, tmps): self.I(f"v_permlane32_swap_b32 v{r}, v{t}")
            for r, t in zip(regs, tmps): self.I(f"v_{op}_f32 v{r}, v{r}, v{t}")
        for r, t in zip(regs, tmps): self.I(f"v_permlane16_swap_b32 v{r}, v{t}")
        for r, t in zip(regs, tmps): self.I(f"v_{op}_f32 v{r}, v{r}, v{t}")
        for r in regs: self.I(f"v_{op}_f32_dpp v{r}, v{r}, v{r} row_ror:8 {DPPM}")
    def build_a(self, dst, src):
        for w in range(4): self.I(f"v_and_b32 v{dst+w}, v{src}, v{M[w]}")
    def poll_issue(self, name, reg, soff, mask=-1, voff=vPOLL, imm=0):
        if mask != -1: self.exec_(mask)
        self.vmem(name, f"buffer_load_dwordx4 {r4(reg)}, {voff}, {WS_}, {soff} offen offset:{imm} sc1")
        if mask != -1: self.exec_(-1)
    def poll_check(self, name, reg, soff, mask=-1, voff=vPOLL, imm=0, code=1):
        lab = f"L_{self.role}_{name}"
        self.wait(name)
        if mask != -1: self.exec_(mask)
        self.I(f"{lab}_chk:")
        self.I(f"v_cmp_ne_u32 vcc, {sTAG}, v{reg+3}")
        self.I(f"s_cbranch_vccnz {lab}_retry")
        if mask != -1: self.exec_(-1)
        c = self.cold
        c += [f"{lab}_retry:",
              f"  buffer_load_dwordx4 {r4(reg)}, {voff}, {WS_}, {soff} offen offset:{imm} sc1",
              f"  s_add_u32 {sSPIN}, {sSPIN}, 1",
              f"  s_cmp_gt_u32 {sSPIN}, 0x40000",
              f"  s_cbranch_scc1 L_abort",
              f"  s_waitcnt vmcnt(0)",
              f"  s_branch {lab}_chk"]
    def lds_put(self, addr, accs, stride=256):
        self.exec_(0xff00ff0000ff00ff)
        for l, d in accs: self.I(f"ds_write_b128 {addr}, {r4(d)} offset:{l*stride}")
        self.exec_(-1)
    def red192_publish(self, name, soff):
        for t in range(3): self.I(f"ds_read2_b32 {r2(T[0]+2*t)}, {vRD0} offset0:{t} offset1:{192+t}")
        self.I(f"v_mov_b32 v{P+3}, {sTAG}")
        self.I("s_waitcnt lgkmcnt(0)")
        for t in range(3): self.I(f"v_add_f32 v{P+t}, v{T[0]+2*t}, v{T[0]+2*t+1}")
        self.red_up([P, P+1, P+2], T[0:3])
        self.exec_(0xff)
        self.vmem(name, f"buffer_store_dwordx4 {r4(P)}, {vU16}, {WS_}, {soff} offen sc1")
        self.exec_(-1)
    def transpose_sum(self, n):
        for t in range(n): self.I(f"ds_bpermute_b32 v{T[t]}, {vBP}, v{P+t}")
        self.I("s_waitcnt lgkmcnt(0)")
        self.red_low(T[0:n])

def srd(g, name, nbytes):
    b = int(name[2:name.index(":")])
    g.I(f"s_mov_b32 s{b+2}, {nbytes}"); g.I(f"s_mov_b32 s{b+3}, 0x20000")
def ptr(g, name, off):
    b = int(name[2:name.index(":")])
    g.I(f"s_load_dwordx2 s[{b}:{b+1}], s[0:1], {off}")

def entry(cfg):
    g = G("E", cfg)
    g.stamp("start")
    ptr(g, X_, 0); ptr(g, K_, 8); ptr(g, WS_, 96)
    g.I(f"""
    s_cmp_ge_u32 s2, 256
    s_cbranch_scc1 L_end
    s_and_b32 {sH}, s2, 7
    s_lshl_b32 {sH}, {sH}, 2
    s_bfe_u32 {sRHO}, s2, 0x20003
    s_add_u32 {sH}, {sH}, {sRHO}
    s_lshr_b32 {sC}, s2, 5
    v_lshrrev_b32 v{T[0]}, 6, v0
    v_and_b32 {vU16}, 7, v0
    v_readfirstlane_b32 {sW}, v{T[0]}
    v_lshlrev_b32 {vU16}, 4, {vU16}
    v_bfe_u32 v{T[1]}, v0, 3, 3
    """)
    srd(g, X_, 1280)
    g.I(f"""
    s_movk_i32 s68, 6144
    s_movk_i32 s69, 12288
    s_cmp_ge_u32 s2, 160
    s_cbranch_scc1 L_F
    """)
    return g

def kv_offset(g):
    g.I(f"""
    s_mul_i32 s34, {sH}, 12582912
    s_mul_i32 s35, {sC}, 196608
    s_add_u32 s34, s34, s35
    s_mul_i32 s35, {sW}, 24576
    s_add_u32 s34, s34, s35
    s_add_u32 s34, s34, {28672*384}
    v_mul_u32_u24 {vKV}, 384, v{T[1]}
    v_add3_u32 {vKV}, {vKV}, {vU16}, s34
    s_movk_i32 s70, 18432
    """)
    srd(g, K_, 402653184)

def kv_load(g, n):
    pol = g.cfg.get("pol", "nt")
    if n < 24: reg, sr, name, j = KR[n], K_, f"K{n}", n
    else: reg, sr, name, j = VR[n-24], V_, f"V{n-24}", n-24
    t, l = divmod(j, 3)
    g.vmem(name, f"buffer_load_dwordx4 {r4(reg)}, {vKV}, {sr}, {SO[t//2]} offen offset:{(t%2)*3072 + l*128} {pol}")

def prologue(role, cfg):
    g = G(role, cfg); pol = cfg.get("pol", "nt")
    if role == "A":
        ptr(g, A_, 24); srd(g, A_, 640*12288)
        g.I(f"""
        s_mul_i32 s34, {sC}, {128*12288}
        s_mul_i32 s35, {sH}, 384
        s_add_u32 s34, s34, s35
        v_lshrrev_b32 v{T[2]}, 3, v0
        v_mul_u32_u24 {vA}, 24576, v{T[2]}
        v_add3_u32 {vA}, {vA}, {vU16}, s34
        s_lshl_b32 s35, {sC}, 8
        v_lshl_add_u32 {vX}, v{T[2]}, 2, s35
        s_waitcnt lgkmcnt(0)
        """)
        g.vmem("x", f"buffer_load_dword v{P}, {vX}, {X_}, 0 offen")
        for j in range(6):
            t, l = divmod(j, 3)
            g.vmem(f"A{j}", f"buffer_load_dwordx4 {r4(AR[j])}, {vA}, {A_}, {'s69' if t else '0'} offen offset:{l*128} {pol}")
    else:
        g.I("L_F:")
        g.I("s_load_dwordx4 s[16:19], s[0:1], 48")
        srd(g, A_, 640*3072)
        g.I(f"""
        s_and_b32 s34, s2, 7
        s_mul_i32 {sL}, s34, 3
        s_add_u32 {sL}, {sL}, {sC}
        s_sub_u32 {sL}, {sL}, 5
        s_and_b32 s34, {sW}, 3
        s_mul_i32 s34, s34, 40
        s_mul_i32 s35, {sRHO}, 160
        s_add_u32 s34, s34, s35
        s_lshl_b32 s35, s34, 1
        v_lshl_add_u32 {vX}, v{T[1]}, 3, s35
        v_lshl_add_u32 v{T[3]}, v{T[1]}, 1, s35
        s_mul_i32 s34, s34, 3072
        s_lshl_b32 s35, {sL}, 7
        s_add_u32 s34, s34, s35
        v_mul_u32_u24 v{T[2]}, 3072, v{T[1]}
        v_add_u32 v{T[4]}, s34, {vU16}
        v_lshl_add_u32 {vA}, v{T[2]}, 2, v{T[4]}
        v_add_u32 v{T[2]}, v{T[2]}, v{T[4]}
        s_mov_b32 s35, {32*3072}
        s_cmp_ge_u32 {sW}, 4
        s_waitcnt lgkmcnt(0)
        s_cselect_b32 s44, s18, s16
        s_cselect_b32 s45, s19, s17
        """)
        g.vmem("x0", f"buffer_load_dwordx2 {r2(P)}, {vX}, {X_}, 0 offen")
        g.vmem("x", f"buffer_load_ushort v{P+2}, v{T[3]}, {X_}, 0 offen offset:64")
        for t in range(4):
            g.vmem(f"A{t}", f"buffer_load_dwordx4 {r4(AR[t])}, {vA}, {A_}, {SO[t//2]} offen offset:{(t%2)*3072} {pol}")
        g.vmem("A4", f"buffer_load_dwordx4 {r4(AR[4])}, v{T[2]}, {A_}, s35 offen {pol}")
    kv_offset(g)
    for n in range(cfg["pre"][role]): kv_load(g, n)
    g.stamp("issued")
    g.I(f"s_load_dword {sTAG}, s[56:57], 0")
    ptr(g, V_, 16); ptr(g, W_, 32 if role == "A" else 64)
    if cfg.get("warm", True):
        g.I("s_mov_b64 exec, 0")
        for w in range(7):
            g.I(f"s_cmp_eq_u32 {sW}, {w}"); g.I(f"s_cbranch_scc1 L_{role}_pad{w}")
        g.I(f"s_branch L_{role}_pad7")
    else:
        g.I(f"s_branch L_{role}_main")
    return g

def main(g):
    role, cfg = g.role, g.cfg
    C = cfg["C"]; pre = cfg["pre"][role]; pol = cfg.get("pol", "nt")
    g.I(f"L_{role}_main:")
    g.I("s_mov_b64 exec, -1")
    g.stamp("main")
    srd(g, V_, 402653184); srd(g, WS_, WS_BYTES); srd(g, W_, 6144*1280 if role == "A" else 1536*1280)
    g.I(f"""
    s_mov_b32 {sSPIN}, 0
    s_mov_b32 {sCS}, {f32(CS)}
    v_and_b32 v{T[0]}, 1, v0
    v_lshlrev_b32 v{T[0]}, 4, v{T[0]}
    v_mov_b32 v{T[2]}, 0xffff
    v_lshlrev_b32 v{T[2]}, v{T[0]}, v{T[2]}
    v_bfe_u32 v{T[0]}, v0, 1, 2
    """)
    for w in range(4):
        g.I(f"v_cmp_eq_u32 vcc, {w}, v{T[0]}"); g.I(f"v_cndmask_b32 v{M[w]}, 0, v{T[2]}, vcc")
    g.I(f"""
    v_lshl_add_u32 {vPOLL}, v{T[1]}, 10, {vU16}
    v_lshlrev_b32 {vBP}, 1, {vU16}
    v_lshl_add_u32 {vBP}, v{T[1]}, 2, {vBP}
    v_bfe_u32 v{T[0]}, v0, 4, 1
    v_lshlrev_b32 v{T[0]}, 4, v{T[0]}
    v_lshl_add_u32 v{T[0]}, {vU16}, 1, v{T[0]}
    v_bfe_u32 v{T[2]}, v0, 5, 1
    s_mul_i32 s34, {sW}, {392*4}
    v_mul_u32_u24 {vWR0}, 768, v{T[2]}
    v_add3_u32 {vWR0}, {vWR0}, v{T[0]}, s34
    s_mul_i32 s34, {sW}, 96
    v_mul_u32_u24 {vRD0}, {392*4}, v{T[1]}
    v_and_b32 v{T[3]}, 7, v0
    v_mul_u32_u24 v{T[3]}, 12, v{T[3]}
    v_add3_u32 {vRD0}, {vRD0}, v{T[3]}, s34
    s_lshl_b32 s34, {sW}, 7
    s_lshl_b32 s35, {sH}, 13
    s_add_u32 s35, s35, s34
    s_add_u32 {sQP}, s35, {QS}
    s_add_u32 {sP2}, s35, {OS}
    s_lshl_b32 s35, {sC}, 10
    s_add_u32 {sPUB1}, {sQP}, s35
    s_add_u32 {sOP}, {sP2}, s35
    s_lshl_b32 s35, {sH}, 10
    s_add_u32 {sMLQ}, s35, {ML}
    s_lshl_b32 s35, {sC}, 7
    s_add_u32 {sMLP}, {sMLQ}, s35
    s_lshl_b32 s35, {sW}, 4
    s_add_u32 {sMLP}, {sMLP}, s35
    """)
    if role == "F":
        g.I(f"""
        s_lshl_b32 s35, {sL}, 12
        s_add_u32 s35, s35, s34
        s_add_u32 {sP2}, s35, {HS}
        s_lshl_b32 s35, {sRHO}, 10
        s_add_u32 {sPUB1}, {sP2}, s35
        s_mul_i32 s34, {sW}, {136*4}
        s_add_u32 s34, s34, {R1}
        v_lshlrev_b32 v{Q[0]}, 8, v{T[2]}
        v_add3_u32 v{Q[0]}, v{Q[0]}, v{T[0]}, s34
        s_lshl_b32 s34, {sW}, 5
        s_add_u32 s34, s34, {R1}
        v_mul_u32_u24 v{Q[0]+1}, {136*4}, v{T[1]}
        v_lshrrev_b32 v{T[3]}, 2, {vU16}
        v_add3_u32 v{Q[0]+1}, v{Q[0]+1}, v{T[3]}, s34
        """)
    for t in range(8): g.I(f"v_mov_b32 v{S[t]}, 0")
    g.I("s_mov_b32 s34, 0x01000100"); g.I("s_mov_b32 s35, 0x03020302")
    g.stamp("prex")
    g.I("s_waitcnt lgkmcnt(0)")
    g.stamp("lgkm")
    g.wait("x")
    g.I(f"s_add_u32 {sTAG}, {sTAG}, 0x9e3779b9")
    g.stamp("x")
    n = pre
    if role == "A":
        for t in range(2):
            g.I(f"v_perm_b32 v{T[0]}, v{P}, v{P}, s{34+t}"); g.build_a(AB[t], T[0])
        for j in range(6):
            t, l = divmod(j, 3)
            g.wait(f"A{j}"); kv_load(g, n); n += 1
            g.I(f"v_mfma_f32_16x16x32_bf16 {r4(D[l])}, {r4(AB[t])}, {r4(AR[j])}, {r4(D[l]) if t else 0}")
        g.lds_put(vWR0, list(enumerate(D)))
        g.I("s_waitcnt lgkmcnt(0)"); g.I("s_barrier")
        g.red192_publish("pub1", sPUB1)
    else:
        for t in range(5):
            g.I(f"v_perm_b32 v{T[0]}, v{P+t//2}, v{P+t//2}, s{34+t%2}"); g.build_a(AB[t%2], T[0])
            g.wait(f"A{t}"); kv_load(g, n); n += 1
            g.I(f"v_mfma_f32_16x16x32_bf16 {r4(D[0])}, {r4(AB[t%2])}, {r4(AR[t])}, {r4(D[0]) if t else 0}")
        g.lds_put(f"v{Q[0]}", [(0, D[0])])
        g.I("s_waitcnt lgkmcnt(0)"); g.I("s_barrier")
        g.I(f"ds_read2_b32 {r2(T[0])}, v{Q[0]+1} offset0:0 offset1:64")
        g.I(f"v_mov_b32 v{P+3}, {sTAG}"); g.I(f"v_mov_b32 v{P+2}, 0")
        g.I("s_waitcnt lgkmcnt(0)")
        g.I(f"v_add_f32 v{P}, v{T[0]}, v{T[1]}")
        g.red_up([P], [T[0]], do32=False)
        g.I(f"v_permlane32_swap_b32 v{P}, v{P+1}")
        g.exec_(0xff)
        g.vmem("pub1", f"buffer_store_dwordx4 {r4(P)}, {vU16}, {WS_}, {sPUB1} offen sc1")
        g.exec_(-1)
    g.stamp("pub1")
    nW = 6 if role == "A" else 3
    st = dict(q=False, qi=False, kt=0, sm=False, vj=0, mli=False, ml=False, hi=False, h=(role == "A"), addr=False, put=0)
    QP, MLP, HP = cfg["QP"], cfg["MLP"], cfg["HP"]
    def zero_poll():
        for t in range(3): g.I(f"v_mov_b32 v{P+t}, 0")
    def consume_q():
        g.poll_check("qpoll", P, sQP, mask=0xffffffffff)
        g.transpose_sum(3)
        g.I(f"""
        v_cvt_pk_bf16_f32 v{T[0]}, v{T[0]}, v{T[1]}
        v_cvt_pk_bf16_f32 v{T[1]}, v{T[2]}, v{T[2]}
        v_lshrrev_b32 v{T[2]}, 3, v0
        v_mul_u32_u24 v{T[2]}, 6, v{T[2]}
        """)
        g.exec_(0x0101010101010101)
        g.I(f"""
        ds_write_b16 v{T[2]}, v{T[0]} offset:{QL}
        ds_write_b16_d16_hi v{T[2]}, v{T[0]} offset:{QL+2}
        ds_write_b16 v{T[2]}, v{T[1]} offset:{QL+4}
        """)
        g.exec_(-1)
        g.I("s_waitcnt lgkmcnt(0)"); g.I("s_barrier")
        for l in range(3): g.I(f"ds_read_b128 {r4(Q[l])}, {vU16} offset:{QL + l*128}")
        g.I("s_waitcnt lgkmcnt(0)")
        g.stamp("q")
    def k_octets(ts):
        for l in range(3):
            for e in range(4):
                for t in ts: g.I(f"v_dot2c_f32_bf16 v{S[t]}, v{KR[3*t+l]+e}, v{Q[l]+e}")
        g.red_low([S[t] for t in ts])
    def softmax():
        if cfg.get("mimic", False):
            pass
        g.I(f"""
        v_max3_f32 v{T[0]}, v{S[0]}, v{S[1]}, v{S[2]}
        v_max3_f32 v{T[1]}, v{S[3]}, v{S[4]}, v{S[5]}
        v_max3_f32 v{T[0]}, v{T[0]}, v{S[6]}, v{S[7]}
        v_max_f32 v{T[0]}, v{T[0]}, v{T[1]}
        """)
        g.red_up([T[0]], [T[1]], op="max")
        g.I(f"""
        v_mul_f32 v{P}, {sCS}, v{T[0]}
        v_readfirstlane_b32 s34, v{P}
        v_mov_b32 {vF}, s34
        """)
        for t in range(8): g.I(f"v_fma_f32 v{S[t]}, v{S[t]}, {sCS}, -{vF}")
        for t in range(8): g.I(f"v_exp_f32 v{S[t]}, v{S[t]}")
        g.I(f"""
        v_add_f32 v{T[0]}, v{S[0]}, v{S[1]}
        v_add_f32 v{T[1]}, v{S[2]}, v{S[3]}
        v_add_f32 v{T[2]}, v{S[4]}, v{S[5]}
        v_add_f32 v{T[3]}, v{S[6]}, v{S[7]}
        v_add_f32 v{T[0]}, v{T[0]}, v{T[1]}
        v_add_f32 v{T[2]}, v{T[2]}, v{T[3]}
        v_add_f32 v{P+1}, v{T[0]}, v{T[2]}
        v_mov_b32 v{P+2}, 0
        v_mov_b32 v{P+3}, {sTAG}
        """)
        g.red_up([P+1], [T[1]])
        g.exec_(1)
        g.vmem("pubml", f"buffer_store_dwordx4 {r4(P)}, {vU16}, {WS_}, {sMLP} offen sc1")
        g.exec_(-1)
        for t in range(8): g.I(f"v_cvt_pk_bf16_f32 v{S[t]}, v{S[t]}, v{S[t]}")
        g.build_a(AB[0], S[0])
        g.stamp("sm")
    vML = "v91"
    def tail_addr():
        g.I(f"""
        v_and_b32 {vML}, 63, v0
        v_lshlrev_b32 {vML}, 4, {vML}
        v_bfe_u32 v{T[1]}, v0, 3, 3
        v_bfe_u32 v{T[0]}, v0, 4, 1
        v_lshlrev_b32 v{T[0]}, 4, v{T[0]}
        v_lshl_add_u32 v{T[0]}, {vU16}, 1, v{T[0]}
        v_bfe_u32 v{T[2]}, v0, 5, 1
        v_lshrrev_b32 v{T[3]}, 1, {vU16}
        """)
        if role == "A":
            g.I(f"""
            s_mul_i32 s34, {sH}, 192
            s_mul_i32 s35, {sW}, 24
            s_add_u32 s34, s34, s35
            s_mul_i32 s34, s34, 1280
            s_lshl_b32 s35, {sC}, 8
            s_add_u32 s34, s34, s35
            v_mul_u32_u24 {vW}, 3840, v{T[1]}
            v_add3_u32 {vW}, {vW}, {vU16}, s34
            s_mul_i32 s34, {sW}, {272*4}
            s_add_u32 s34, s34, {R1}
            v_lshlrev_b32 {vWR1}, 9, v{T[2]}
            v_add3_u32 {vWR1}, {vWR1}, v{T[0]}, s34
            s_lshl_b32 s34, {sW}, 6
            s_add_u32 s34, s34, {R1}
            v_mul_u32_u24 {vRD1}, {272*4}, v{T[1]}
            v_add3_u32 {vRD1}, {vRD1}, v{T[3]}, s34
            s_lshl_b32 s34, {sC}, 3
            s_add_u32 s34, s34, {sW}
            s_lshl_b32 s34, s34, 13
            s_lshl_b32 s35, {sH}, 7
            s_add_u32 s34, s34, s35
            s_add_u32 {sFP}, s34, {FS}
            """)
        else:
            g.I(f"""
            s_mul_i32 {sFP}, {sRHO}, 12
            s_min_u32 {sFP}, {sFP}, 32
            s_lshl_b32 s34, {sL}, 6
            s_lshl_b32 s35, {sW}, 3
            s_add_u32 s34, s34, s35
            s_mul_i32 s34, s34, 1280
            s_lshl_b32 s35, {sFP}, 5
            s_add_u32 s34, s34, s35
            v_mul_u32_u24 {vW}, 1280, v{T[1]}
            v_add3_u32 {vW}, {vW}, {vU16}, s34
            s_cmp_ge_u32 {sRHO}, 2
            s_cselect_b32 {sW3}, 0x1000000, 0
            v_add_u32 v{AB3[1]}, {sW3}, {vW}
            s_mul_i32 s34, {sW}, {400*4}
            s_add_u32 s34, s34, {R2}
            v_mul_u32_u24 {vWR1}, 768, v{T[2]}
            v_add3_u32 {vWR1}, {vWR1}, v{T[0]}, s34
            s_lshl_b32 s34, {sW}, 6
            s_add_u32 s34, s34, {R2}
            v_mul_u32_u24 {vRD1}, {400*4}, v{T[1]}
            v_add3_u32 {vRD1}, {vRD1}, v{T[3]}, s34
            s_add_u32 s34, {sFP}, {sW}
            s_lshl_b32 s34, s34, 13
            s_lshl_b32 s35, {sL}, 7
            s_add_u32 s34, s34, s35
            s_add_u32 {sFP}, s34, {FS + 4096}
            """)
    def consume_ml():
        g.poll_check("mlpoll", P, sMLQ, voff=vML)
        g.I(f"v_mov_b32 v{T[0]}, v{P}")
        g.red_low([T[0]], op="max"); g.red_up([T[0]], [T[1]], op="max")
        g.I(f"""
        v_readfirstlane_b32 s34, v{T[0]}
        v_subrev_f32 v{P}, s34, v{P}
        v_subrev_f32 {vF}, s34, {vF}
        v_exp_f32 v{P}, v{P}
        v_exp_f32 {vF}, {vF}
        v_mul_f32 v{T[0]}, v{P}, v{P+1}
        """)
        g.red_low([T[0]]); g.red_up([T[0]], [T[1]])
        g.I(f"""
        v_rcp_f32 v{T[0]}, v{T[0]}
        v_readfirstlane_b32 s34, v{T[0]}
        v_mul_f32 {vF}, s34, {vF}
        """)
    def consume_h():
        g.poll_check("hpoll", P, sP2, mask=0xffffffff)
        g.transpose_sum(2)
        g.I(f"""
        v_cvt_pk_bf16_f32 v{T[0]}, v{T[0]}, v{T[1]}
        v_and_b32 v{T[1]}, 0xffff0000, v{T[0]}
        v_lshlrev_b32 v{T[0]}, 16, v{T[0]}
        v_mul_f32 v{T[2]}, {f32(-LOG2E)}, v{T[0]}
        v_exp_f32 v{T[2]}, v{T[2]}
        v_add_f32 v{T[2]}, 1.0, v{T[2]}
        v_rcp_f32 v{T[2]}, v{T[2]}
        v_mul_f32 v{T[0]}, v{T[0]}, v{T[2]}
        v_cvt_pk_bf16_f32 v{T[0]}, v{T[0]}, v{T[0]}
        v_lshlrev_b32 v{T[0]}, 16, v{T[0]}
        v_mul_f32 v{T[0]}, v{T[0]}, v{T[1]}
        v_cvt_pk_bf16_f32 v{T[0]}, v{T[0]}, v{T[0]}
        """)
        g.build_a(AB3[0], T[0])
    def v_mfma(j):
        t, l = divmod(j, 3)
        g.I(f"v_mfma_f32_16x16x32_bf16 {r4(D[l])}, {r4(AB[t%2])}, {r4(VR[j])}, {r4(D[l]) if t else 0}")
        if l == 0 and t < 7: g.build_a(AB[(t+1)%2], S[t+1])
    def put_d(l):
        for e in range(4): g.I(f"v_mul_f32 v{D[l]+e}, v{D[l]+e}, {vF}")
        g.lds_put(vWR0, [(l, D[l])])
    def work(n):
        landed = lambda x: x not in g.vm
        if not st["qi"] and n > QP:
            zero_poll(); g.poll_issue("qpoll", P, sQP, mask=0xffffffffff); st["qi"] = True
        elif st["qi"] and not st["q"] and landed("qpoll"):
            consume_q(); st["q"] = True
        elif st["q"] and st["kt"] < 8:
            ts = [t for t in range(st["kt"], min(st["kt"]+2, 8)) if 3*t+2 < n and landed(f"K{3*t+2}")]
            if ts: k_octets(ts); st["kt"] = ts[-1] + 1
        if st["kt"] == 8 and not st["sm"]:
            softmax(); st["sm"] = True
        elif st["sm"] and not st["addr"]:
            tail_addr(); st["addr"] = True
        elif st["addr"] and not st["h"] and not st["hi"] and n > HP and landed("pubml"):
            zero_poll(); g.poll_issue("hpoll", P, sP2, mask=0xffffffff); st["hi"] = True
        elif st["hi"] and not st["h"] and landed("hpoll"):
            consume_h(); st["h"] = True
        if st["addr"] and st["h"] and not st["mli"] and n > MLP and landed("pubml"):
            g.poll_issue("mlpoll", P, sMLQ, voff=vML); st["mli"] = True
        elif st["mli"] and not st["ml"] and landed("mlpoll"):
            consume_ml(); st["ml"] = True
        if st["sm"]:
            while st["vj"] < 24 and st["vj"] + 24 < n and landed(f"V{st['vj']}"):
                v_mfma(st["vj"]); st["vj"] += 1
    def w_load(j):
        if role == "A":
            t, l = divmod(j, 2)
            g.vmem(f"W{j}", f"buffer_load_dwordx4 {r4(WR[j])}, {vW}, {W_}, 0 offen offset:{t*1280 + l*128} {pol}")
        else:
            g.vmem(f"W{j}", f"buffer_load_dwordx4 {r4(WR[j])}, {('v%d' % AB3[1]) if j == 2 else vW}, {W_}, 0 offen offset:{j*128} {pol}")
    while n < 48 + nW:
        g.cap((C if n < 48 else cfg.get("CW", C)) - 1)
        if n < 48: kv_load(g, n)
        else:
            assert st["addr"]
            w_load(n - 48)
        n += 1
        work(n)
    assert st["mli"] and st["h"], st
    if not st["ml"]:
        consume_ml(); st["ml"] = True
    while st["vj"] < 24:
        j = st["vj"]
        g.wait(f"V{j}"); v_mfma(j); st["vj"] += 1
        if j == 22: put_d(0); st["put"] = 1
    g.stamp("vdone")
    for l in range(st["put"], 3): put_d(l)
    g.I("s_waitcnt lgkmcnt(0)"); g.I("s_barrier")
    g.red192_publish("pubo", sOP)
    if role == "A":
        PP = AB3[2] + 4
        g.wait(f"W{cfg.get('OPW', 3)}")
        g.I("s_nop 1")
        g.poll_issue("opoll", P, sP2)
        g.poll_check("opoll", P, sP2)
        g.stamp("o")
        g.transpose_sum(3)
        for t in range(3): g.I(f"v_cvt_pk_bf16_f32 v{T[t]}, v{T[t]}, v{T[t]}")
        for t in range(3):
            g.build_a(AB3[t], T[t])
        for t in range(3):
            for l in range(2):
                g.I(f"v_mfma_f32_16x16x32_bf16 {r4(D[l])}, {r4(AB3[t])}, {r4(WR[2*t+l])}, {r4(D[l]) if t else 0}")
        g.I(f"v_mov_b32 v{P+3}, {sTAG}")
        g.lds_put(vWR1, [(0, D[0]), (1, D[1])])
        g.I("s_waitcnt lgkmcnt(0)"); g.I("s_barrier")
        g.I(f"ds_read2_b64 {r4(AB3[0])}, {vRD1} offset0:0 offset1:64")
        g.I("s_waitcnt lgkmcnt(0)")
        g.I(f"v_add_f32 v{P}, v{AB3[0]}, v{AB3[0]+2}"); g.I(f"v_add_f32 v{P+1}, v{AB3[0]+1}, v{AB3[0]+3}")
        g.red_up([P, P+1], T[0:2])
        g.exec_(0xff)
        g.vmem("pubf", f"buffer_store_dwordx4 {r4(P)}, {vU16}, {WS_}, {sFP} offen sc1")
        g.stamp("end")
        g.I("s_branch L_fin")
    else:
        for l in range(3):
            g.wait(f"W{l}")
            g.I(f"v_mfma_f32_16x16x32_bf16 {r4(D[l])}, {r4(AB3[0])}, {r4(WR[l])}, 0")
        g.lds_put(vWR1, list(enumerate(D)))
        g.I("s_waitcnt lgkmcnt(0)"); g.I("s_barrier")
        g.I(f"ds_read2_b64 {r4(AB3[0])}, {vRD1} offset0:0 offset1:96")
        g.I(f"ds_read2_b64 {r4(AB3[1])}, {vRD1} offset0:64 offset1:160")
        PB = AB3[2]
        g.I(f"v_mov_b32 v{PB+3}, {sTAG}"); g.I(f"v_mov_b32 v{PB+2}, 0")
        g.I("s_waitcnt lgkmcnt(0)")
        g.I(f"v_add_f32 v{P}, v{AB3[0]}, v{AB3[0]+2}"); g.I(f"v_add_f32 v{P+1}, v{AB3[0]+1}, v{AB3[0]+3}")
        g.I(f"v_add_f32 v{PB}, v{AB3[1]}, v{AB3[1]+2}"); g.I(f"v_add_f32 v{PB+1}, v{AB3[1]+1}, v{AB3[1]+3}")
        g.red_up([P, P+1, PB, PB+1], T[0:4])
        g.exec_(0xff)
        g.I(f"buffer_store_dwordx4 {r4(P)}, {vU16}, {WS_}, {sFP} offen sc1")
        g.stamp("o")
        g.I(f"""
        s_cmp_ge_u32 {sRHO}, 2
        s_cbranch_scc1 L_F_red
        s_cmp_ge_u32 {sW}, 4
        s_cbranch_scc1 L_fin7
        s_add_u32 {sFP}, {sFP}, {8*8192}
        buffer_store_dwordx4 {r4(PB)}, {vU16}, {WS_}, {sFP} offen sc1
        s_branch L_fin7
        L_F_red:
        s_cmp_lg_u32 {sW}, 0
        s_cbranch_scc1 L_fin7
        s_lshl_b32 {sRED}, {sL}, 1
        s_add_u32 {sRED}, {sRED}, {sRHO}
        s_sub_u32 {sRED}, {sRED}, 2
        s_cmp_ge_u32 {sRED}, 40
        s_cbranch_scc1 L_fin7
        """)
        reducer(g)
    return g

def reducer(g):
    g.vm = []
    vML = "v91"
    B = [104, 108, 112]; Aa = [116, 120, 124, 128]
    XX, GG = 132, 140
    ptr(g, O_, 80); ptr(g, G_, 72)
    g.exec_(-1)
    srd(g, O_, 1280); srd(g, G_, 1280)
    g.I(f"""
    s_lshl_b32 s34, {sRED}, 13
    s_add_u32 s34, s34, {FS}
    s_add_u32 s35, s34, 4096
    v_lshrrev_b32 v{T[0]}, 2, {vML}
    """)
    g.vmem("x4", f"buffer_load_dwordx4 {r4(XX)}, {vML}, {X_}, 0 offen")
    g.vmem("x1", f"buffer_load_dword v{XX+4}, v{T[0]}, {X_}, 0 offen offset:1024")
    g.I("s_waitcnt lgkmcnt(0)")
    g.vmem("g4", f"buffer_load_dwordx4 {r4(GG)}, {vML}, {G_}, 0 offen")
    g.vmem("g1", f"buffer_load_dword v{GG+4}, v{T[0]}, {G_}, 0 offen offset:1024")
    g.vmem("o1", f"buffer_load_dword v{GG+5}, v{T[0]}, {O_}, 0 offen")
    for k in range(3): g.poll_issue(f"b{k}", B[k], "s35", voff=vML, imm=k*1024)
    g.wait("g1")
    g.I(f"v_mov_b32 v{T[5]}, 0"); g.I(f"v_mov_b32 v{T[4]}, 0x3f803f80")
    for k in range(5):
        g.I(f"""
        v_lshlrev_b32 v{T[1]}, 16, v{XX+k}
        v_lshlrev_b32 v{T[2]}, 16, v{GG+k}
        v_and_b32 v{XX+k}, 0xffff0000, v{XX+k}
        v_and_b32 v{GG+k}, 0xffff0000, v{GG+k}
        v_mul_f32 v{T[1]}, v{T[1]}, v{T[2]}
        v_mul_f32 v{T[2]}, v{XX+k}, v{GG+k}
        v_cvt_pk_bf16_f32 v{T[1]}, v{T[1]}, v{T[2]}
        v_lshlrev_b32 v{T[2]}, 16, v{T[1]}
        v_and_b32 v{T[1]}, 0xffff0000, v{T[1]}
        v_add_f32 v{T[5]}, v{T[5]}, v{T[2]}
        v_add_f32 v{T[5]}, v{T[5]}, v{T[1]}
        """)
    g.red_low([T[5]]); g.red_up([T[5]], [T[1]])
    g.I(f"""
    v_cvt_pk_bf16_f32 v{T[5]}, v{T[5]}, v{T[5]}
    v_lshlrev_b32 v{T[5]}, 16, v{T[5]}
    v_mul_f32 v{T[5]}, {f32(-LOG2E)}, v{T[5]}
    v_exp_f32 v{T[5]}, v{T[5]}
    v_add_f32 v{T[5]}, 1.0, v{T[5]}
    v_rcp_f32 v{T[5]}, v{T[5]}
    v_cvt_pk_bf16_f32 v{T[5]}, v{T[5]}, v{T[5]}
    v_lshlrev_b32 v{T[5]}, 16, v{T[5]}
    v_sub_f32 v{T[4]}, 1.0, v{T[5]}
    v_cvt_pk_bf16_f32 v{T[4]}, v{T[4]}, v{T[4]}
    v_lshlrev_b32 v{T[4]}, 16, v{T[4]}
    """)
    for k in range(3): g.poll_check(f"b{k}", B[k], "s35", voff=vML, imm=k*1024)
    for k in range(4): g.poll_issue(f"a{k}", Aa[k], "s34", voff=vML, imm=k*1024)
    for e in range(2):
        g.I(f"v_add_f32 v{B[0]+e}, v{B[0]+e}, v{B[1]+e}");
    for e in range(2):
        g.I(f"v_add_f32 v{B[0]+e}, v{B[0]+e}, v{B[2]+e}")
    g.red_up([B[0], B[0]+1], T[1:3])
    g.I(f"""
    v_cvt_pk_bf16_f32 v{T[1]}, v{B[0]}, v{B[0]+1}
    v_lshlrev_b32 v{B[0]}, 16, v{T[1]}
    v_and_b32 v{B[0]+1}, 0xffff0000, v{T[1]}
    v_mul_f32 v{B[0]}, v{B[0]}, v{T[4]}
    v_mul_f32 v{B[0]+1}, v{B[0]+1}, v{T[4]}
    v_cvt_pk_bf16_f32 v{T[1]}, v{B[0]}, v{B[0]+1}
    v_lshlrev_b32 v{B[0]}, 16, v{T[1]}
    v_and_b32 v{B[0]+1}, 0xffff0000, v{T[1]}
    s_lshl_b32 s35, {sRED}, 5
    """)
    g.I("L_F_achk:")
    g.I("s_waitcnt vmcnt(0)")
    g.I(f"""
    v_cmp_ne_u32 s[4:5], {sTAG}, v{Aa[0]+3}
    v_cmp_ne_u32 s[6:7], {sTAG}, v{Aa[1]+3}
    v_cmp_ne_u32 s[8:9], {sTAG}, v{Aa[2]+3}
    v_cmp_ne_u32 vcc, {sTAG}, v{Aa[3]+3}
    v_add_f32 v{T[1]}, v{Aa[0]}, v{Aa[1]}
    v_add_f32 v{T[2]}, v{Aa[0]+1}, v{Aa[1]+1}
    s_or_b64 s[4:5], s[4:5], s[6:7]
    s_or_b64 s[8:9], s[8:9], vcc
    s_or_b64 s[4:5], s[4:5], s[8:9]
    s_cbranch_scc1 L_F_aretry
    v_add_f32 v{Aa[2]}, v{Aa[2]}, v{Aa[3]}
    v_add_f32 v{Aa[2]+1}, v{Aa[2]+1}, v{Aa[3]+1}
    v_add_f32 v{T[1]}, v{T[1]}, v{Aa[2]}
    v_add_f32 v{T[2]}, v{T[2]}, v{Aa[2]+1}
    """)
    g.cold.append("L_F_aretry:")
    for k in range(4): g.cold.append(f"  buffer_load_dwordx4 {r4(Aa[k])}, {vML}, {WS_}, s34 offen offset:{k*1024} sc1")
    g.cold += [f"  s_add_u32 {sSPIN}, {sSPIN}, 1", f"  s_cmp_gt_u32 {sSPIN}, 0x40000", "  s_cbranch_scc1 L_abort", "  s_branch L_F_achk"]
    g.red_up([T[1], T[2]], [Aa[0], Aa[1]])
    osc = g.cfg.get("outpol", "sc1")
    g.I(f"""
    v_cvt_pk_bf16_f32 v{T[1]}, v{T[1]}, v{T[2]}
    v_and_b32 v{T[2]}, 0xffff0000, v{T[1]}
    v_lshlrev_b32 v{T[1]}, 16, v{T[1]}
    v_mul_f32 v{T[1]}, v{T[1]}, v{T[5]}
    v_mul_f32 v{T[2]}, v{T[2]}, v{T[5]}
    v_cvt_pk_bf16_f32 v{T[1]}, v{T[1]}, v{T[2]}
    v_and_b32 v{T[2]}, 0xffff0000, v{T[1]}
    v_lshlrev_b32 v{T[1]}, 16, v{T[1]}
    v_add_f32 v{T[1]}, v{T[1]}, v{B[0]}
    v_add_f32 v{T[2]}, v{T[2]}, v{B[0]+1}
    v_cvt_pk_bf16_f32 v{T[1]}, v{T[1]}, v{T[2]}
    s_mov_b64 exec, 0xff
    buffer_store_dword v{T[1]}, v{T[0]}, {O_}, s35 offen {osc}
    s_cmp_lg_u32 {sRED}, 0
    s_cbranch_scc1 L_fin7
    v_mov_b32 v{T[2]}, {sTAG}
    s_mov_b64 exec, 1
    buffer_store_dword v{T[2]}, v{T[0]}, {WS_}, 0 offen sc1
    """)
    g.I("s_branch L_fin7")

def isize(t):
    i = Ins(t)
    if not i.op: return 0
    op = i.op; body = t.split(";")[0]
    if op.startswith(("buffer_", "global_", "ds_", "s_load", "s_memreal", "v_mfma")) or "_dpp" in op: return 8
    if op.startswith(("v_add3", "v_lshl_add", "v_bfe", "v_perm_b32", "v_fma_", "v_max3", "v_cvt_pk", "v_mad")): return 8
    import re
    lit = re.search(r"[ ,](0x[0-9a-f]+|\d+)\s*(,|$)", body)
    if lit and not op.startswith(("s_waitcnt", "s_nop", "s_movk")):
        v = int(lit.group(1), 0)
        if v > 64: return 8
    return 4

def add_pads(lines, role, npad=16):
    total = sum(isize(t) for t in lines)
    out = []; acc = 0; k = 0
    for t in lines:
        if k < npad and acc >= (k + 0.5) * total / npad and Ins(t).op:
            nxt = f"L_{role}_pad{k+8}" if k < npad - 8 else f"L_{role}_main"
            out.append(f"L_{role}_pad{k}:"); out.append(f"  s_cbranch_execz {nxt}")
            k += 1
        out.append(t); acc += isize(t)
    assert k == npad
    return out

def gen(path, **kw):
    cfg = dict(C=6, pre=dict(A=0, F=1), QP=16, MLP=39, HP=30)
    cfg.update(kw)
    e = entry(cfg)
    L = list(e.L)
    mains = []
    for role in "AF":
        g = prologue(role, cfg)
        L += g.L; g.L = []
        main(g)
        body = g.L + g.cold
        body = fix_hazards(body)
        if cfg.get("warm", True): body = add_pads(body, role)
        mains += body
    L = fix_hazards(L) + mains
    if not cfg.get("ts"):
        L = ["  s_endpgm" if l.strip() in ("s_branch L_fin", "s_branch L_fin7") else l for l in L]
    fin = ["L_fin7:"]
    if cfg.get("ts"): fin.append("  s_memrealtime s[98:99]")
    fin.append("L_fin:")
    if cfg.get("ts"):
        fin += ["  s_waitcnt lgkmcnt(0)", "  s_mov_b64 exec, 1", f"  s_lshl_b32 s34, s2, 3", f"  s_add_u32 s34, s34, {sW}", "  s_lshl_b32 s34, s34, 6",
                "  s_add_u32 s56, s56, 0x10000000", "  s_addc_u32 s57, s57, 0", "  v_mov_b32 v1, s34"]
        for j in range(16): fin.append(f"  v_mov_b32 v{8+j}, s{84+j}")
        for j in range(4): fin.append(f"  global_store_dwordx4 v1, v[{8+4*j}:{11+4*j}], s[56:57] offset:{16*j} sc1")
    fin += ["L_end:", "  s_endpgm", "L_abort:", "  s_endpgm"]
    txt = HDR + f"; @launch grid=(256,1,1) block=(512,1,1) lds={LDS_BYTES}\n"
    txt += '.amdgcn_target "amdgcn-amd-amdhsa--gfx950"\n.text\n' + f".globl {KN}_kernel\n.p2align 8\n.type {KN}_kernel,@function\n{KN}_kernel:\n"
    txt += "\n".join(L + fin) + "\n"
    txt += f""".section .rodata,"a"
.p2align 6
.amdhsa_kernel {KN}_kernel
  .amdhsa_next_free_vgpr 256
  .amdhsa_next_free_sgpr 102
  .amdhsa_accum_offset 256
  .amdhsa_group_segment_fixed_size 0
  .amdhsa_kernarg_size 104
  .amdhsa_user_sgpr_count 2
  .amdhsa_user_sgpr_kernarg_segment_ptr 1
  .amdhsa_system_sgpr_workgroup_id_x 1
.end_amdhsa_kernel
"""
    open(path, "w").write(txt)

if __name__ == "__main__":
    gen("k_base.s")
    TS1 = ["start", "x", "pub1", "q", "sm", "vdone", "o", "end"]
    TS2 = ["start", "issued", "main", "prex", "lgkm", "x", "pub1", "end"]
    gen("k_base_ts.s", ts=TS1)
    gen("k_base_ts2.s", ts=TS2)
    gen("k_nowarm_ts2.s", ts=TS2, warm=False)
    gen("k_nowarm.s", warm=False)
    gen("k_defpol.s", pol="")
```

```python
import sys, math, struct
from asmlib import Prog, fix_hazards, Ins
KN = "gated_mix__sliding_block_cached__glu_gated_swiglu__decode"
HDR = open("cdna_kernels/" + KN + ".s.ref").read().split("; Override launch")[0]

def f32(x): return "0x%08x" % struct.unpack("<I", struct.pack("<f", x))[0]
LOG2E = 1.4426950408889634
CS = LOG2E / math.sqrt(192.0)

QS, HS, ML, OS, FS = 0x1000, 0x50000, 0x70000, 0x80000, 0xC0000
WS_BYTES = 0x110000
R0, R1, R2, QL = 0, 12544, 12544 + 8704, 12544 + 8704 + 12800
LDS_BYTES = QL + 384
sH, sC, sW, sTAG = "s30", "s31", "s32", "s33"
K_, V_, A_, W_, X_, WS_, O_, G_ = "s[36:39]", "s[40:43]", "s[44:47]", "s[48:51]", "s[52:55]", "s[56:59]", "s[60:63]", "s[64:67]"
SO = ["0", "s68", "s69", "s70"]
sPUB1, sQP, sMLP, sMLQ, sOP, sP2, sFP, sRED, sSPIN, sCS, sRHO, sL, sW3 = ["s%d" % i for i in range(71, 84)]
vKV, vA, vX = "v1", "v2", "v3"
M = [4, 5, 6, 7]
AB = [8, 12]
D = [16, 20, 24]
Q = [28, 32, 36]
S = list(range(40, 48))
P = 48
vWR0, vRD0, vU16, vPOLL, vBP, vF = "v52", "v53", "v54", "v55", "v56", "v57"
T = list(range(58, 64))
KR = [64 + 4*i for i in range(24)]
VR = [160 + 4*i for i in range(24)]
AR = VR[18:24]
WR = KR[0:6]
vW, vWR1, vRD1 = "v88", "v89", "v90"
AB3 = [92, 96, 100]
def r4(b): return f"v[{b}:{b+3}]"
def r2(b): return f"v[{b}:{b+1}]"
DPPM = "row_mask:0xf bank_mask:0xf"

class G(Prog):
    def __init__(self, role, cfg):
        super().__init__()
        self.role = role; self.cfg = cfg; self.cold = []; self.nst = 0
    def stamp(self, name):
        ts = self.cfg.get("ts")
        if ts and name in ts:
            k = ts.index(name)
            self.I(f"s_memrealtime s[{84+2*k}:{85+2*k}]")
    def exec_(self, m):
        if m == -1: self.I("s_mov_b64 exec, -1")
        elif m < 2**31: self.I(f"s_mov_b64 exec, {hex(m)}")
        else:
            self.I(f"s_mov_b32 exec_lo, {hex(m & 0xffffffff)}"); self.I(f"s_mov_b32 exec_hi, {hex(m >> 32)}")
    def red_low(self, regs, op="add"):
        for pat in ("quad_perm:[1,0,3,2]", "quad_perm:[2,3,0,1]", "row_half_mirror"):
            for r in regs: self.I(f"v_{op}_f32_dpp v{r}, v{r}, v{r} {pat} {DPPM}")
    def red_up(self, regs, tmps, op="add", do32=True):
        if do32:
            for r, t in zip(regs, tmps): self.I(f"v_permlane32_swap_b32 v{r}, v{t}")
            for r, t in zip(regs, tmps): self.I(f"v_{op}_f32 v{r}, v{r}, v{t}")
        for r, t in zip(regs, tmps): self.I(f"v_permlane16_swap_b32 v{r}, v{t}")
        for r, t in zip(regs, tmps): self.I(f"v_{op}_f32 v{r}, v{r}, v{t}")
        for r in regs: self.I(f"v_{op}_f32_dpp v{r}, v{r}, v{r} row_ror:8 {DPPM}")
    def build_a(self, dst, src):
        for w in range(4): self.I(f"v_and_b32 v{dst+w}, v{src}, v{M[w]}")
    def poll_issue(self, name, reg, soff, mask=-1, voff=vPOLL, imm=0):
        if mask != -1: self.exec_(mask)
        self.vmem(name, f"buffer_load_dwordx4 {r4(reg)}, {voff}, {WS_}, {soff} offen offset:{imm} sc1")
        if mask != -1: self.exec_(-1)
    def poll_check(self, name, reg, soff, mask=-1, voff=vPOLL, imm=0, code=1):
        lab = f"L_{self.role}_{name}"
        self.wait(name)
        if mask != -1: self.exec_(mask)
        self.I(f"{lab}_chk:")
        self.I(f"v_cmp_ne_u32 vcc, {sTAG}, v{reg+3}")
        self.I(f"s_cbranch_vccnz {lab}_retry")
        if mask != -1: self.exec_(-1)
        c = self.cold
        c += [f"{lab}_retry:",
              f"  buffer_load_dwordx4 {r4(reg)}, {voff}, {WS_}, {soff} offen offset:{imm} sc1",
              f"  s_add_u32 {sSPIN}, {sSPIN}, 1",
              f"  s_cmp_gt_u32 {sSPIN}, 0x40000",
              f"  s_cbranch_scc1 L_abort",
              f"  s_waitcnt vmcnt(0)",
              f"  s_branch {lab}_chk"]
    def lds_put(self, addr, accs, stride=256):
        self.exec_(0xff00ff0000ff00ff)
        for l, d in accs: self.I(f"ds_write_b128 {addr}, {r4(d)} offset:{l*stride}")
        self.exec_(-1)
    def red192_publish(self, name, soff):
        for t in range(3): self.I(f"ds_read2_b32 {r2(T[0]+2*t)}, {vRD0} offset0:{t} offset1:{192+t}")
        self.I(f"v_mov_b32 v{P+3}, {sTAG}")
        self.I("s_waitcnt lgkmcnt(0)")
        for t in range(3): self.I(f"v_add_f32 v{P+t}, v{T[0]+2*t}, v{T[0]+2*t+1}")
        self.red_up([P, P+1, P+2], T[0:3])
        self.exec_(0xff)
        self.vmem(name, f"buffer_store_dwordx4 {r4(P)}, {vU16}, {WS_}, {soff} offen sc1")
        self.exec_(-1)
    def transpose_sum(self, n):
        for t in range(n): self.I(f"ds_bpermute_b32 v{T[t]}, {vBP}, v{P+t}")
        self.I("s_waitcnt lgkmcnt(0)")
        self.red_low(T[0:n])

def srd(g, name, nbytes):
    b = int(name[2:name.index(":")])
    g.I(f"s_mov_b32 s{b+2}, {nbytes}"); g.I(f"s_mov_b32 s{b+3}, 0x20000")
def ptr(g, name, off):
    b = int(name[2:name.index(":")])
    g.I(f"s_load_dwordx2 s[{b}:{b+1}], s[0:1], {off}")

def entry(cfg):
    g = G("E", cfg)
    g.stamp("start")
    ptr(g, X_, 0); ptr(g, K_, 8); ptr(g, WS_, 96)
    g.I(f"""
    s_cmp_ge_u32 s2, 256
    s_cbranch_scc1 L_end
    s_and_b32 {sH}, s2, 7
    s_lshl_b32 {sH}, {sH}, 2
    s_bfe_u32 {sRHO}, s2, 0x20003
    s_add_u32 {sH}, {sH}, {sRHO}
    s_lshr_b32 {sC}, s2, 5
    v_lshrrev_b32 v{T[0]}, 6, v0
    v_and_b32 {vU16}, 7, v0
    v_readfirstlane_b32 {sW}, v{T[0]}
    v_lshlrev_b32 {vU16}, 4, {vU16}
    v_bfe_u32 v{T[1]}, v0, 3, 3
    """)
    srd(g, X_, 1280)
    g.I(f"""
    s_movk_i32 s68, 6144
    s_movk_i32 s69, 12288
    s_cmp_ge_u32 s2, 160
    s_cbranch_scc1 L_F
    """)
    return g

def kv_offset(g):
    g.I(f"""
    s_mul_i32 s34, {sH}, 12582912
    s_mul_i32 s35, {sC}, 196608
    s_add_u32 s34, s34, s35
    s_mul_i32 s35, {sW}, 24576
    s_add_u32 s34, s34, s35
    s_add_u32 s34, s34, {28672*384}
    v_mul_u32_u24 {vKV}, 384, v{T[1]}
    v_add3_u32 {vKV}, {vKV}, {vU16}, s34
    s_movk_i32 s70, 18432
    """)
    srd(g, K_, 402653184)

def kv_load(g, n):
    pol = g.cfg.get("pol", "nt")
    if n < 24: reg, sr, name, j = KR[n], K_, f"K{n}", n
    else: reg, sr, name, j = VR[n-24], V_, f"V{n-24}", n-24
    t, l = divmod(j, 3)
    g.vmem(name, f"buffer_load_dwordx4 {r4(reg)}, {vKV}, {sr}, {SO[t//2]} offen offset:{(t%2)*3072 + l*128} {pol}")

def prologue(role, cfg):
    g = G(role, cfg); pol = cfg.get("pol", "nt")
    if role == "A":
        ptr(g, A_, 24); srd(g, A_, 640*12288)
        g.I(f"""
        s_mul_i32 s34, {sC}, {128*12288}
        s_mul_i32 s35, {sH}, 384
        s_add_u32 s34, s34, s35
        v_lshrrev_b32 v{T[2]}, 3, v0
        v_mul_u32_u24 {vA}, 24576, v{T[2]}
        v_add3_u32 {vA}, {vA}, {vU16}, s34
        s_lshl_b32 s35, {sC}, 8
        v_lshl_add_u32 {vX}, v{T[2]}, 2, s35
        s_waitcnt lgkmcnt(0)
        """)
        g.vmem("x", f"buffer_load_dword v{P}, {vX}, {X_}, 0 offen")
        for j in range(6):
            t, l = divmod(j, 3)
            g.vmem(f"A{j}", f"buffer_load_dwordx4 {r4(AR[j])}, {vA}, {A_}, {'s69' if t else '0'} offen offset:{l*128} {pol}")
    else:
        g.I("L_F:")
        g.I("s_load_dwordx4 s[16:19], s[0:1], 48")
        srd(g, A_, 640*3072)
        g.I(f"""
        s_and_b32 s34, s2, 7
        s_mul_i32 {sL}, s34, 3
        s_add_u32 {sL}, {sL}, {sC}
        s_sub_u32 {sL}, {sL}, 5
        s_and_b32 s34, {sW}, 3
        s_mul_i32 s34, s34, 40
        s_mul_i32 s35, {sRHO}, 160
        s_add_u32 s34, s34, s35
        s_lshl_b32 s35, s34, 1
        v_lshl_add_u32 {vX}, v{T[1]}, 3, s35
        v_lshl_add_u32 v{T[3]}, v{T[1]}, 1, s35
        s_mul_i32 s34, s34, 3072
        s_lshl_b32 s35, {sL}, 7
        s_add_u32 s34, s34, s35
        v_mul_u32_u24 v{T[2]}, 3072, v{T[1]}
        v_add_u32 v{T[4]}, s34, {vU16}
        v_lshl_add_u32 {vA}, v{T[2]}, 2, v{T[4]}
        v_add_u32 v{T[2]}, v{T[2]}, v{T[4]}
        s_mov_b32 s35, {32*3072}
        s_cmp_ge_u32 {sW}, 4
        s_waitcnt lgkmcnt(0)
        s_cselect_b32 s44, s18, s16
        s_cselect_b32 s45, s19, s17
        """)
        g.vmem("x0", f"buffer_load_dwordx2 {r2(P)}, {vX}, {X_}, 0 offen")
        g.vmem("x", f"buffer_load_ushort v{P+2}, v{T[3]}, {X_}, 0 offen offset:64")
        for t in range(4):
            g.vmem(f"A{t}", f"buffer_load_dwordx4 {r4(AR[t])}, {vA}, {A_}, {SO[t//2]} offen offset:{(t%2)*3072} {pol}")
        g.vmem("A4", f"buffer_load_dwordx4 {r4(AR[4])}, v{T[2]}, {A_}, s35 offen {pol}")
    kv_offset(g)
    for n in range(cfg["pre"][role]): kv_load(g, n)
    g.stamp("issued")
    g.I(f"s_load_dword {sTAG}, s[56:57], 0")
    ptr(g, V_, 16); ptr(g, W_, 32 if role == "A" else 64)
    if cfg.get("warm", True):
        g.I("s_mov_b64 exec, 0")
        for w in range(7):
            g.I(f"s_cmp_eq_u32 {sW}, {w}"); g.I(f"s_cbranch_scc1 L_{role}_pad{w}")
        g.I(f"s_branch L_{role}_pad7")
    else:
        g.I(f"s_branch L_{role}_main")
    return g

def main(g):
    role, cfg = g.role, g.cfg
    C = cfg["C"]; pre = cfg["pre"][role]; pol = cfg.get("pol", "nt")
    g.I(f"L_{role}_main:")
    g.I("s_mov_b64 exec, -1")
    g.stamp("main")
    srd(g, V_, 402653184); srd(g, WS_, WS_BYTES); srd(g, W_, 6144*1280 if role == "A" else 1536*1280)
    g.I(f"""
    s_mov_b32 {sSPIN}, 0
    s_mov_b32 {sCS}, {f32(CS)}
    v_and_b32 v{T[0]}, 1, v0
    v_lshlrev_b32 v{T[0]}, 4, v{T[0]}
    v_mov_b32 v{T[2]}, 0xffff
    v_lshlrev_b32 v{T[2]}, v{T[0]}, v{T[2]}
    v_bfe_u32 v{T[0]}, v0, 1, 2
    """)
    for w in range(4):
        g.I(f"v_cmp_eq_u32 vcc, {w}, v{T[0]}"); g.I(f"v_cndmask_b32 v{M[w]}, 0, v{T[2]}, vcc")
    g.I(f"""
    v_lshl_add_u32 {vPOLL}, v{T[1]}, 10, {vU16}
    v_lshlrev_b32 {vBP}, 1, {vU16}
    v_lshl_add_u32 {vBP}, v{T[1]}, 2, {vBP}
    v_bfe_u32 v{T[0]}, v0, 4, 1
    v_lshlrev_b32 v{T[0]}, 4, v{T[0]}
    v_lshl_add_u32 v{T[0]}, {vU16}, 1, v{T[0]}
    v_bfe_u32 v{T[2]}, v0, 5, 1
    s_mul_i32 s34, {sW}, {392*4}
    v_mul_u32_u24 {vWR0}, 768, v{T[2]}
    v_add3_u32 {vWR0}, {vWR0}, v{T[0]}, s34
    s_mul_i32 s34, {sW}, 96
    v_mul_u32_u24 {vRD0}, {392*4}, v{T[1]}
    v_and_b32 v{T[3]}, 7, v0
    v_mul_u32_u24 v{T[3]}, 12, v{T[3]}
    v_add3_u32 {vRD0}, {vRD0}, v{T[3]}, s34
    s_lshl_b32 s34, {sW}, 7
    s_lshl_b32 s35, {sH}, 13
    s_add_u32 s35, s35, s34
    s_add_u32 {sQP}, s35, {QS}
    s_add_u32 {sP2}, s35, {OS}
    s_lshl_b32 s35, {sC}, 10
    s_add_u32 {sPUB1}, {sQP}, s35
    s_add_u32 {sOP}, {sP2}, s35
    s_lshl_b32 s35, {sH}, 10
    s_add_u32 {sMLQ}, s35, {ML}
    s_lshl_b32 s35, {sC}, 7
    s_add_u32 {sMLP}, {sMLQ}, s35
    s_lshl_b32 s35, {sW}, 4
    s_add_u32 {sMLP}, {sMLP}, s35
    """)
    if role == "F":
        g.I(f"""
        s_lshl_b32 s35, {sL}, 12
        s_add_u32 s35, s35, s34
        s_add_u32 {sP2}, s35, {HS}
        s_lshl_b32 s35, {sRHO}, 10
        s_add_u32 {sPUB1}, {sP2}, s35
        s_mul_i32 s34, {sW}, {136*4}
        s_add_u32 s34, s34, {R1}
        v_lshlrev_b32 v{Q[0]}, 8, v{T[2]}
        v_add3_u32 v{Q[0]}, v{Q[0]}, v{T[0]}, s34
        s_lshl_b32 s34, {sW}, 5
        s_add_u32 s34, s34, {R1}
        v_mul_u32_u24 v{Q[0]+1}, {136*4}, v{T[1]}
        v_lshrrev_b32 v{T[3]}, 2, {vU16}
        v_add3_u32 v{Q[0]+1}, v{Q[0]+1}, v{T[3]}, s34
        """)
    for t in range(8): g.I(f"v_mov_b32 v{S[t]}, 0")
    g.I("s_mov_b32 s34, 0x01000100"); g.I("s_mov_b32 s35, 0x03020302")
    g.stamp("prex")
    g.I("s_waitcnt lgkmcnt(0)")
    g.stamp("lgkm")
    g.wait("x")
    g.I(f"s_add_u32 {sTAG}, {sTAG}, 0x9e3779b9")
    g.stamp("x")
    n = pre
    if role == "A":
        for t in range(2):
            g.I(f"v_perm_b32 v{T[0]}, v{P}, v{P}, s{34+t}"); g.build_a(AB[t], T[0])
        for j in range(6):
            t, l = divmod(j, 3)
            g.wait(f"A{j}"); kv_load(g, n); n += 1
            g.I(f"v_mfma_f32_16x16x32_bf16 {r4(D[l])}, {r4(AB[t])}, {r4(AR[j])}, {r4(D[l]) if t else 0}")
        g.lds_put(vWR0, list(enumerate(D)))
        g.I("s_waitcnt lgkmcnt(0)"); g.I("s_barrier")
        g.red192_publish("pub1", sPUB1)
    else:
        for t in range(5):
            g.I(f"v_perm_b32 v{T[0]}, v{P+t//2}, v{P+t//2}, s{34+t%2}"); g.build_a(AB[t%2], T[0])
            g.wait(f"A{t}"); kv_load(g, n); n += 1
            g.I(f"v_mfma_f32_16x16x32_bf16 {r4(D[0])}, {r4(AB[t%2])}, {r4(AR[t])}, {r4(D[0]) if t else 0}")
        g.lds_put(f"v{Q[0]}", [(0, D[0])])
        g.I("s_waitcnt lgkmcnt(0)"); g.I("s_barrier")
        g.I(f"ds_read2_b32 {r2(T[0])}, v{Q[0]+1} offset0:0 offset1:64")
        g.I(f"v_mov_b32 v{P+3}, {sTAG}"); g.I(f"v_mov_b32 v{P+2}, 0")
        g.I("s_waitcnt lgkmcnt(0)")
        g.I(f"v_add_f32 v{P}, v{T[0]}, v{T[1]}")
        g.red_up([P], [T[0]], do32=False)
        g.I(f"v_permlane32_swap_b32 v{P}, v{P+1}")
        g.exec_(0xff)
        g.vmem("pub1", f"buffer_store_dwordx4 {r4(P)}, {vU16}, {WS_}, {sPUB1} offen sc1")
        g.exec_(-1)
    g.stamp("pub1")
    nW = 6 if role == "A" else 3
    st = dict(q=False, qi=False, kt=0, sm=False, vj=0, mli=False, ml=False, hi=False, h=(role == "A"), addr=False, put=0)
    QP, MLP, HP = cfg["QP"], cfg["MLP"], cfg["HP"]
    def zero_poll():
        for t in range(3): g.I(f"v_mov_b32 v{P+t}, 0")
    def consume_q():
        g.poll_check("qpoll", P, sQP, mask=0xffffffffff)
        g.transpose_sum(3)
        g.I(f"""
        v_cvt_pk_bf16_f32 v{T[0]}, v{T[0]}, v{T[1]}
        v_cvt_pk_bf16_f32 v{T[1]}, v{T[2]}, v{T[2]}
        v_lshrrev_b32 v{T[2]}, 3, v0
        v_mul_u32_u24 v{T[2]}, 6, v{T[2]}
        """)
        g.exec_(0x0101010101010101)
        g.I(f"""
        ds_write_b16 v{T[2]}, v{T[0]} offset:{QL}
        ds_write_b16_d16_hi v{T[2]}, v{T[0]} offset:{QL+2}
        ds_write_b16 v{T[2]}, v{T[1]} offset:{QL+4}
        """)
        g.exec_(-1)
        g.I("s_waitcnt lgkmcnt(0)"); g.I("s_barrier")
        for l in range(3): g.I(f"ds_read_b128 {r4(Q[l])}, {vU16} offset:{QL + l*128}")
        g.I("s_waitcnt lgkmcnt(0)")
        g.stamp("q")
    def k_octets(ts):
        for l in range(3):
            for e in range(4):
                for t in ts: g.I(f"v_dot2c_f32_bf16 v{S[t]}, v{KR[3*t+l]+e}, v{Q[l]+e}")
        g.red_low([S[t] for t in ts])
    def softmax():
        if cfg.get("mimic", False):
            pass
        g.I(f"""
        v_max3_f32 v{T[0]}, v{S[0]}, v{S[1]}, v{S[2]}
        v_max3_f32 v{T[1]}, v{S[3]}, v{S[4]}, v{S[5]}
        v_max3_f32 v{T[0]}, v{T[0]}, v{S[6]}, v{S[7]}
        v_max_f32 v{T[0]}, v{T[0]}, v{T[1]}
        """)
        g.red_up([T[0]], [T[1]], op="max")
        g.I(f"""
        v_mul_f32 v{P}, {sCS}, v{T[0]}
        v_readfirstlane_b32 s34, v{P}
        v_mov_b32 {vF}, s34
        """)
        for t in range(8): g.I(f"v_fma_f32 v{S[t]}, v{S[t]}, {sCS}, -{vF}")
        for t in range(8): g.I(f"v_exp_f32 v{S[t]}, v{S[t]}")
        g.I(f"""
        v_add_f32 v{T[0]}, v{S[0]}, v{S[1]}
        v_add_f32 v{T[1]}, v{S[2]}, v{S[3]}
        v_add_f32 v{T[2]}, v{S[4]}, v{S[5]}
        v_add_f32 v{T[3]}, v{S[6]}, v{S[7]}
        v_add_f32 v{T[0]}, v{T[0]}, v{T[1]}
        v_add_f32 v{T[2]}, v{T[2]}, v{T[3]}
        v_add_f32 v{P+1}, v{T[0]}, v{T[2]}
        v_mov_b32 v{P+2}, 0
        v_mov_b32 v{P+3}, {sTAG}
        """)
        g.red_up([P+1], [T[1]])
        g.exec_(1)
        g.vmem("pubml", f"buffer_store_dwordx4 {r4(P)}, {vU16}, {WS_}, {sMLP} offen sc1")
        g.exec_(-1)
        for t in range(8): g.I(f"v_cvt_pk_bf16_f32 v{S[t]}, v{S[t]}, v{S[t]}")
        g.build_a(AB[0], S[0])
        g.stamp("sm")
    vML = "v91"
    def tail_addr():
        g.I(f"""
        v_and_b32 {vML}, 63, v0
        v_lshlrev_b32 {vML}, 4, {vML}
        v_bfe_u32 v{T[1]}, v0, 3, 3
        v_bfe_u32 v{T[0]}, v0, 4, 1
        v_lshlrev_b32 v{T[0]}, 4, v{T[0]}
        v_lshl_add_u32 v{T[0]}, {vU16}, 1, v{T[0]}
        v_bfe_u32 v{T[2]}, v0, 5, 1
        v_lshrrev_b32 v{T[3]}, 1, {vU16}
        """)
        if role == "A":
            g.I(f"""
            s_mul_i32 s34, {sH}, 192
            s_mul_i32 s35, {sW}, 24
            s_add_u32 s34, s34, s35
            s_mul_i32 s34, s34, 1280
            s_lshl_b32 s35, {sC}, 8
            s_add_u32 s34, s34, s35
            v_mul_u32_u24 {vW}, 3840, v{T[1]}
            v_add3_u32 {vW}, {vW}, {vU16}, s34
            s_mul_i32 s34, {sW}, {272*4}
            s_add_u32 s34, s34, {R1}
            v_lshlrev_b32 {vWR1}, 9, v{T[2]}
            v_add3_u32 {vWR1}, {vWR1}, v{T[0]}, s34
            s_lshl_b32 s34, {sW}, 6
            s_add_u32 s34, s34, {R1}
            v_mul_u32_u24 {vRD1}, {272*4}, v{T[1]}
            v_add3_u32 {vRD1}, {vRD1}, v{T[3]}, s34
            s_lshl_b32 s34, {sC}, 3
            s_add_u32 s34, s34, {sW}
            s_lshl_b32 s34, s34, 13
            s_lshl_b32 s35, {sH}, 7
            s_add_u32 s34, s34, s35
            s_add_u32 {sFP}, s34, {FS}
            """)
        else:
            g.I(f"""
            s_mul_i32 {sFP}, {sRHO}, 12
            s_min_u32 {sFP}, {sFP}, 32
            s_lshl_b32 s34, {sL}, 6
            s_lshl_b32 s35, {sW}, 3
            s_add_u32 s34, s34, s35
            s_mul_i32 s34, s34, 1280
            s_lshl_b32 s35, {sFP}, 5
            s_add_u32 s34, s34, s35
            v_mul_u32_u24 {vW}, 1280, v{T[1]}
            v_add3_u32 {vW}, {vW}, {vU16}, s34
            s_cmp_ge_u32 {sRHO}, 2
            s_cselect_b32 {sW3}, 0x1000000, 0
            v_add_u32 v{AB3[1]}, {sW3}, {vW}
            s_mul_i32 s34, {sW}, {400*4}
            s_add_u32 s34, s34, {R2}
            v_mul_u32_u24 {vWR1}, 768, v{T[2]}
            v_add3_u32 {vWR1}, {vWR1}, v{T[0]}, s34
            s_lshl_b32 s34, {sW}, 6
            s_add_u32 s34, s34, {R2}
            v_mul_u32_u24 {vRD1}, {400*4}, v{T[1]}
            v_add3_u32 {vRD1}, {vRD1}, v{T[3]}, s34
            s_add_u32 s34, {sFP}, {sW}
            s_lshl_b32 s34, s34, 13
            s_lshl_b32 s35, {sL}, 7
            s_add_u32 s34, s34, s35
            s_add_u32 {sFP}, s34, {FS + 4096}
            """)
    def consume_ml():
        g.poll_check("mlpoll", P, sMLQ, voff=vML)
        g.I(f"v_mov_b32 v{T[0]}, v{P}")
        g.red_low([T[0]], op="max"); g.red_up([T[0]], [T[1]], op="max")
        g.I(f"""
        v_readfirstlane_b32 s34, v{T[0]}
        v_subrev_f32 v{P}, s34, v{P}
        v_subrev_f32 {vF}, s34, {vF}
        v_exp_f32 v{P}, v{P}
        v_exp_f32 {vF}, {vF}
        v_mul_f32 v{T[0]}, v{P}, v{P+1}
        """)
        g.red_low([T[0]]); g.red_up([T[0]], [T[1]])
        g.I(f"""
        v_rcp_f32 v{T[0]}, v{T[0]}
        v_readfirstlane_b32 s34, v{T[0]}
        v_mul_f32 {vF}, s34, {vF}
        """)
    def consume_h():
        g.poll_check("hpoll", P, sP2, mask=0xffffffff)
        g.transpose_sum(2)
        g.I(f"""
        v_cvt_pk_bf16_f32 v{T[0]}, v{T[0]}, v{T[1]}
        v_and_b32 v{T[1]}, 0xffff0000, v{T[0]}
        v_lshlrev_b32 v{T[0]}, 16, v{T[0]}
        v_mul_f32 v{T[2]}, {f32(-LOG2E)}, v{T[0]}
        v_exp_f32 v{T[2]}, v{T[2]}
        v_add_f32 v{T[2]}, 1.0, v{T[2]}
        v_rcp_f32 v{T[2]}, v{T[2]}
        v_mul_f32 v{T[0]}, v{T[0]}, v{T[2]}
        v_cvt_pk_bf16_f32 v{T[0]}, v{T[0]}, v{T[0]}
        v_lshlrev_b32 v{T[0]}, 16, v{T[0]}
        v_mul_f32 v{T[0]}, v{T[0]}, v{T[1]}
        v_cvt_pk_bf16_f32 v{T[0]}, v{T[0]}, v{T[0]}
        """)
        g.build_a(AB3[0], T[0])
    def v_mfma(j):
        t, l = divmod(j, 3)
        g.I(f"v_mfma_f32_16x16x32_bf16 {r4(D[l])}, {r4(AB[t%2])}, {r4(VR[j])}, {r4(D[l]) if t else 0}")
        if l == 0 and t < 7: g.build_a(AB[(t+1)%2], S[t+1])
    def put_d(l):
        for e in range(4): g.I(f"v_mul_f32 v{D[l]+e}, v{D[l]+e}, {vF}")
        g.lds_put(vWR0, [(l, D[l])])
    def work(n):
        landed = lambda x: x not in g.vm
        if not st["qi"] and n > QP:
            zero_poll(); g.poll_issue("qpoll", P, sQP, mask=0xffffffffff); st["qi"] = True
        elif st["qi"] and not st["q"] and landed("qpoll"):
            consume_q(); st["q"] = True
        elif st["q"] and st["kt"] < 8:
            ts = [t for t in range(st["kt"], min(st["kt"]+2, 8)) if 3*t+2 < n and landed(f"K{3*t+2}")]
            if ts: k_octets(ts); st["kt"] = ts[-1] + 1
        if st["kt"] == 8 and not st["sm"]:
            softmax(); st["sm"] = True
        elif st["sm"] and not st["addr"]:
            tail_addr(); st["addr"] = True
        elif st["addr"] and not st["h"] and not st["hi"] and n > HP and landed("pubml"):
            zero_poll(); g.poll_issue("hpoll", P, sP2, mask=0xffffffff); st["hi"] = True
        elif st["hi"] and not st["h"] and landed("hpoll"):
            consume_h(); st["h"] = True
        if st["addr"] and st["h"] and not st["mli"] and n > MLP and landed("pubml"):
            g.poll_issue("mlpoll", P, sMLQ, voff=vML); st["mli"] = True
        elif st["mli"] and not st["ml"] and landed("mlpoll"):
            consume_ml(); st["ml"] = True
        if st["sm"]:
            while st["vj"] < 24 and st["vj"] + 24 < n and landed(f"V{st['vj']}"):
                v_mfma(st["vj"]); st["vj"] += 1
    def w_load(j):
        if role == "A":
            t, l = divmod(j, 2)
            g.vmem(f"W{j}", f"buffer_load_dwordx4 {r4(WR[j])}, {vW}, {W_}, 0 offen offset:{t*1280 + l*128} {pol}")
        else:
            g.vmem(f"W{j}", f"buffer_load_dwordx4 {r4(WR[j])}, {('v%d' % AB3[1]) if j == 2 else vW}, {W_}, 0 offen offset:{j*128} {pol}")
    while n < 48 + nW:
        g.cap((C if n < 48 else cfg.get("CW", C)) - 1)
        if n < 48: kv_load(g, n)
        else:
            assert st["addr"]
            w_load(n - 48)
        n += 1
        work(n)
    assert st["mli"] and st["h"], st
    if not st["ml"]:
        consume_ml(); st["ml"] = True
    while st["vj"] < 24:
        j = st["vj"]
        g.wait(f"V{j}"); v_mfma(j); st["vj"] += 1
        if j == 22: put_d(0); st["put"] = 1
    g.stamp("vdone")
    for l in range(st["put"], 3): put_d(l)
    g.I("s_waitcnt lgkmcnt(0)"); g.I("s_barrier")
    g.red192_publish("pubo", sOP)
    if role == "A":
        PP = AB3[2] + 4
        g.wait(f"W{cfg.get('OPW', 3)}")
        g.I("s_nop 1")
        g.poll_issue("opoll", P, sP2)
        g.poll_check("opoll", P, sP2)
        g.stamp("o")
        g.transpose_sum(3)
        for t in range(3): g.I(f"v_cvt_pk_bf16_f32 v{T[t]}, v{T[t]}, v{T[t]}")
        for t in range(3):
            g.build_a(AB3[t], T[t])
        for t in range(3):
            for l in range(2):
                g.I(f"v_mfma_f32_16x16x32_bf16 {r4(D[l])}, {r4(AB3[t])}, {r4(WR[2*t+l])}, {r4(D[l]) if t else 0}")
        g.I(f"v_mov_b32 v{P+3}, {sTAG}")
        g.lds_put(vWR1, [(0, D[0]), (1, D[1])])
        g.I("s_waitcnt lgkmcnt(0)"); g.I("s_barrier")
        g.I(f"ds_read2_b64 {r4(AB3[0])}, {vRD1} offset0:0 offset1:64")
        g.I("s_waitcnt lgkmcnt(0)")
        g.I(f"v_add_f32 v{P}, v{AB3[0]}, v{AB3[0]+2}"); g.I(f"v_add_f32 v{P+1}, v{AB3[0]+1}, v{AB3[0]+3}")
        g.red_up([P, P+1], T[0:2])
        g.exec_(0xff)
        g.vmem("pubf", f"buffer_store_dwordx4 {r4(P)}, {vU16}, {WS_}, {sFP} offen sc1")
        g.stamp("end")
        g.I("s_branch L_fin")
    else:
        for l in range(3):
            g.wait(f"W{l}")
            g.I(f"v_mfma_f32_16x16x32_bf16 {r4(D[l])}, {r4(AB3[0])}, {r4(WR[l])}, 0")
        g.lds_put(vWR1, list(enumerate(D)))
        g.I("s_waitcnt lgkmcnt(0)"); g.I("s_barrier")
        g.I(f"ds_read2_b64 {r4(AB3[0])}, {vRD1} offset0:0 offset1:96")
        g.I(f"ds_read2_b64 {r4(AB3[1])}, {vRD1} offset0:64 offset1:160")
        PB = AB3[2]
        g.I(f"v_mov_b32 v{PB+3}, {sTAG}"); g.I(f"v_mov_b32 v{PB+2}, 0")
        g.I("s_waitcnt lgkmcnt(0)")
        g.I(f"v_add_f32 v{P}, v{AB3[0]}, v{AB3[0]+2}"); g.I(f"v_add_f32 v{P+1}, v{AB3[0]+1}, v{AB3[0]+3}")
        g.I(f"v_add_f32 v{PB}, v{AB3[1]}, v{AB3[1]+2}"); g.I(f"v_add_f32 v{PB+1}, v{AB3[1]+1}, v{AB3[1]+3}")
        g.red_up([P, P+1, PB, PB+1], T[0:4])
        g.exec_(0xff)
        g.I(f"buffer_store_dwordx4 {r4(P)}, {vU16}, {WS_}, {sFP} offen sc1")
        g.stamp("o")
        g.I(f"""
        s_cmp_ge_u32 {sRHO}, 2
        s_cbranch_scc1 L_F_red
        s_cmp_ge_u32 {sW}, 4
        s_cbranch_scc1 L_fin7
        s_add_u32 {sFP}, {sFP}, {8*8192}
        buffer_store_dwordx4 {r4(PB)}, {vU16}, {WS_}, {sFP} offen sc1
        s_branch L_fin7
        L_F_red:
        s_cmp_lg_u32 {sW}, 0
        s_cbranch_scc1 L_fin7
        s_lshl_b32 {sRED}, {sL}, 1
        s_add_u32 {sRED}, {sRED}, {sRHO}
        s_sub_u32 {sRED}, {sRED}, 2
        s_cmp_ge_u32 {sRED}, 40
        s_cbranch_scc1 L_fin7
        """)
        reducer(g)
    return g

def reducer(g):
    g.vm = []
    vML = "v91"
    B = [104, 108, 112]; Aa = [116, 120, 124, 128]
    XX, GG = 132, 140
    ptr(g, O_, 80); ptr(g, G_, 72)
    g.exec_(-1)
    srd(g, O_, 1280); srd(g, G_, 1280)
    g.I(f"""
    s_lshl_b32 s34, {sRED}, 13
    s_add_u32 s34, s34, {FS}
    s_add_u32 s35, s34, 4096
    v_lshrrev_b32 v{T[0]}, 2, {vML}
    """)
    g.vmem("x4", f"buffer_load_dwordx4 {r4(XX)}, {vML}, {X_}, 0 offen")
    g.vmem("x1", f"buffer_load_dword v{XX+4}, v{T[0]}, {X_}, 0 offen offset:1024")
    g.I("s_waitcnt lgkmcnt(0)")
    g.vmem("g4", f"buffer_load_dwordx4 {r4(GG)}, {vML}, {G_}, 0 offen")
    g.vmem("g1", f"buffer_load_dword v{GG+4}, v{T[0]}, {G_}, 0 offen offset:1024")
    g.vmem("o1", f"buffer_load_dword v{GG+5}, v{T[0]}, {O_}, 0 offen")
    for k in range(3): g.poll_issue(f"b{k}", B[k], "s35", voff=vML, imm=k*1024)
    g.wait("g1")
    g.I(f"v_mov_b32 v{T[5]}, 0"); g.I(f"v_mov_b32 v{T[4]}, 0x3f803f80")
    for k in range(5):
        g.I(f"""
        v_lshlrev_b32 v{T[1]}, 16, v{XX+k}
        v_lshlrev_b32 v{T[2]}, 16, v{GG+k}
        v_and_b32 v{XX+k}, 0xffff0000, v{XX+k}
        v_and_b32 v{GG+k}, 0xffff0000, v{GG+k}
        v_mul_f32 v{T[1]}, v{T[1]}, v{T[2]}
        v_mul_f32 v{T[2]}, v{XX+k}, v{GG+k}
        v_cvt_pk_bf16_f32 v{T[1]}, v{T[1]}, v{T[2]}
        v_lshlrev_b32 v{T[2]}, 16, v{T[1]}
        v_and_b32 v{T[1]}, 0xffff0000, v{T[1]}
        v_add_f32 v{T[5]}, v{T[5]}, v{T[2]}
        v_add_f32 v{T[5]}, v{T[5]}, v{T[1]}
        """)
    g.red_low([T[5]]); g.red_up([T[5]], [T[1]])
    g.I(f"""
    v_cvt_pk_bf16_f32 v{T[5]}, v{T[5]}, v{T[5]}
    v_lshlrev_b32 v{T[5]}, 16, v{T[5]}
    v_mul_f32 v{T[5]}, {f32(-LOG2E)}, v{T[5]}
    v_exp_f32 v{T[5]}, v{T[5]}
    v_add_f32 v{T[5]}, 1.0, v{T[5]}
    v_rcp_f32 v{T[5]}, v{T[5]}
    v_cvt_pk_bf16_f32 v{T[5]}, v{T[5]}, v{T[5]}
    v_lshlrev_b32 v{T[5]}, 16, v{T[5]}
    v_sub_f32 v{T[4]}, 1.0, v{T[5]}
    v_cvt_pk_bf16_f32 v{T[4]}, v{T[4]}, v{T[4]}
    v_lshlrev_b32 v{T[4]}, 16, v{T[4]}
    """)
    for k in range(3): g.poll_check(f"b{k}", B[k], "s35", voff=vML, imm=k*1024)
    for k in range(4): g.poll_issue(f"a{k}", Aa[k], "s34", voff=vML, imm=k*1024)
    for e in range(2):
        g.I(f"v_add_f32 v{B[0]+e}, v{B[0]+e}, v{B[1]+e}");
    for e in range(2):
        g.I(f"v_add_f32 v{B[0]+e}, v{B[0]+e}, v{B[2]+e}")
    g.red_up([B[0], B[0]+1], T[1:3])
    g.I(f"""
    v_cvt_pk_bf16_f32 v{T[1]}, v{B[0]}, v{B[0]+1}
    v_lshlrev_b32 v{B[0]}, 16, v{T[1]}
    v_and_b32 v{B[0]+1}, 0xffff0000, v{T[1]}
    v_mul_f32 v{B[0]}, v{B[0]}, v{T[4]}
    v_mul_f32 v{B[0]+1}, v{B[0]+1}, v{T[4]}
    v_cvt_pk_bf16_f32 v{T[1]}, v{B[0]}, v{B[0]+1}
    v_lshlrev_b32 v{B[0]}, 16, v{T[1]}
    v_and_b32 v{B[0]+1}, 0xffff0000, v{T[1]}
    s_lshl_b32 s35, {sRED}, 5
    """)
    g.I("L_F_achk:")
    g.I("s_waitcnt vmcnt(0)")
    g.I(f"""
    v_cmp_ne_u32 s[4:5], {sTAG}, v{Aa[0]+3}
    v_cmp_ne_u32 s[6:7], {sTAG}, v{Aa[1]+3}
    v_cmp_ne_u32 s[8:9], {sTAG}, v{Aa[2]+3}
    v_cmp_ne_u32 vcc, {sTAG}, v{Aa[3]+3}
    v_add_f32 v{T[1]}, v{Aa[0]}, v{Aa[1]}
    v_add_f32 v{T[2]}, v{Aa[0]+1}, v{Aa[1]+1}
    s_or_b64 s[4:5], s[4:5], s[6:7]
    s_or_b64 s[8:9], s[8:9], vcc
    s_or_b64 s[4:5], s[4:5], s[8:9]
    s_cbranch_scc1 L_F_aretry
    v_add_f32 v{Aa[2]}, v{Aa[2]}, v{Aa[3]}
    v_add_f32 v{Aa[2]+1}, v{Aa[2]+1}, v{Aa[3]+1}
    v_add_f32 v{T[1]}, v{T[1]}, v{Aa[2]}
    v_add_f32 v{T[2]}, v{T[2]}, v{Aa[2]+1}
    """)
    g.cold.append("L_F_aretry:")
    for k in range(4): g.cold.append(f"  buffer_load_dwordx4 {r4(Aa[k])}, {vML}, {WS_}, s34 offen offset:{k*1024} sc1")
    g.cold += [f"  s_add_u32 {sSPIN}, {sSPIN}, 1", f"  s_cmp_gt_u32 {sSPIN}, 0x40000", "  s_cbranch_scc1 L_abort", "  s_branch L_F_achk"]
    g.red_up([T[1], T[2]], [Aa[0], Aa[1]])
    osc = g.cfg.get("outpol", "sc1")
    g.I(f"""
    v_cvt_pk_bf16_f32 v{T[1]}, v{T[1]}, v{T[2]}
    v_and_b32 v{T[2]}, 0xffff0000, v{T[1]}
    v_lshlrev_b32 v{T[1]}, 16, v{T[1]}
    v_mul_f32 v{T[1]}, v{T[1]}, v{T[5]}
    v_mul_f32 v{T[2]}, v{T[2]}, v{T[5]}
    v_cvt_pk_bf16_f32 v{T[1]}, v{T[1]}, v{T[2]}
    v_and_b32 v{T[2]}, 0xffff0000, v{T[1]}
    v_lshlrev_b32 v{T[1]}, 16, v{T[1]}
    v_add_f32 v{T[1]}, v{T[1]}, v{B[0]}
    v_add_f32 v{T[2]}, v{T[2]}, v{B[0]+1}
    v_cvt_pk_bf16_f32 v{T[1]}, v{T[1]}, v{T[2]}
    s_mov_b64 exec, 0xff
    buffer_store_dword v{T[1]}, v{T[0]}, {O_}, s35 offen {osc}
    s_cmp_lg_u32 {sRED}, 0
    s_cbranch_scc1 L_fin7
    v_mov_b32 v{T[2]}, {sTAG}
    s_mov_b64 exec, 1
    buffer_store_dword v{T[2]}, v{T[0]}, {WS_}, 0 offen sc1
    """)
    g.I("s_branch L_fin7")

def isize(t):
    i = Ins(t)
    if not i.op: return 0
    op = i.op; body = t.split(";")[0]
    if op.startswith(("buffer_", "global_", "ds_", "s_load", "s_memreal", "v_mfma")) or "_dpp" in op: return 8
    if op.startswith(("v_add3", "v_lshl_add", "v_bfe", "v_perm_b32", "v_fma_", "v_max3", "v_cvt_pk", "v_mad")): return 8
    import re
    lit = re.search(r"[ ,](0x[0-9a-f]+|\d+)\s*(,|$)", body)
    if lit and not op.startswith(("s_waitcnt", "s_nop", "s_movk")):
        v = int(lit.group(1), 0)
        if v > 64: return 8
    return 4

def add_pads(lines, role, npad=16):
    total = sum(isize(t) for t in lines)
    out = []; acc = 0; k = 0
    for t in lines:
        if k < npad and acc >= (k + 0.5) * total / npad and Ins(t).op:
            nxt = f"L_{role}_pad{k+8}" if k < npad - 8 else f"L_{role}_main"
            out.append(f"L_{role}_pad{k}:"); out.append(f"  s_cbranch_execz {nxt}")
            k += 1
        out.append(t); acc += isize(t)
    assert k == npad
    return out

def gen(path, **kw):
    cfg = dict(C=6, pre=dict(A=0, F=1), QP=16, MLP=39, HP=30)
    cfg.update(kw)
    e = entry(cfg)
    L = list(e.L)
    mains = []
    for role in "AF":
        g = prologue(role, cfg)
        L += g.L; g.L = []
        main(g)
        body = g.L + g.cold
        body = fix_hazards(body)
        if cfg.get("warm", True): body = add_pads(body, role)
        mains += body
    L = fix_hazards(L) + mains
    if not cfg.get("ts"):
        L = ["  s_endpgm" if l.strip() in ("s_branch L_fin", "s_branch L_fin7") else l for l in L]
    fin = ["L_fin7:"]
    if cfg.get("ts"): fin.append("  s_memrealtime s[98:99]")
    fin.append("L_fin:")
    if cfg.get("padto"):
        fin += ["  s_waitcnt lgkmcnt(0)", f"  s_add_u32 s84, s84, {cfg['padto']}", "L_padloop:", "  s_memrealtime s[86:87]", "  s_waitcnt lgkmcnt(0)",
                "  s_sub_u32 s34, s86, s84", "  s_cmp_lt_i32 s34, 0", "  s_cbranch_scc1 L_padloop"]
    elif cfg.get("ts"):
        fin += ["  s_waitcnt lgkmcnt(0)", "  s_mov_b64 exec, 1", f"  s_lshl_b32 s34, s2, 3", f"  s_add_u32 s34, s34, {sW}", "  s_lshl_b32 s34, s34, 6",
                "  s_add_u32 s56, s56, 0x10000000", "  s_addc_u32 s57, s57, 0", "  v_mov_b32 v1, s34"]
        for j in range(16): fin.append(f"  v_mov_b32 v{8+j}, s{84+j}")
        for j in range(4): fin.append(f"  global_store_dwordx4 v1, v[{8+4*j}:{11+4*j}], s[56:57] offset:{16*j} sc1")
    fin += ["L_end:", "  s_endpgm", "L_abort:", "  s_endpgm"]
    txt = HDR + f"; @launch grid=(256,1,1) block=(512,1,1) lds={LDS_BYTES}\n"
    txt += '.amdgcn_target "amdgcn-amd-amdhsa--gfx950"\n.text\n' + f".globl {KN}_kernel\n.p2align 8\n.type {KN}_kernel,@function\n{KN}_kernel:\n"
    txt += "\n".join(L + fin) + "\n"
    txt += f""".section .rodata,"a"
.p2align 6
.amdhsa_kernel {KN}_kernel
  .amdhsa_next_free_vgpr 256
  .amdhsa_next_free_sgpr 102
  .amdhsa_accum_offset 256
  .amdhsa_group_segment_fixed_size 0
  .amdhsa_kernarg_size 104
  .amdhsa_user_sgpr_count 2
  .amdhsa_user_sgpr_kernarg_segment_ptr 1
  .amdhsa_system_sgpr_workgroup_id_x 1
.end_amdhsa_kernel
"""
    open(path, "w").write(txt)

if __name__ == "__main__":
    gen("k_base.s")
    TS1 = ["start", "x", "pub1", "q", "sm", "vdone", "o", "end"]
    TS2 = ["start", "issued", "main", "prex", "lgkm", "x", "pub1", "end"]
    gen("k_base_ts.s", ts=TS1)
    gen("k_base_ts2.s", ts=TS2)
    gen("k_nowarm_ts2.s", ts=TS2, warm=False)
    gen("k_nowarm.s", warm=False)
    gen("k_defpol.s", pol="")

    gen("k_pad40.s", ts=["start"], padto=4000)
    gen("k_pad60.s", ts=["start"], padto=6000)
```

```python
import sys, math, struct
from asmlib import Prog, fix_hazards
KN = "gated_mix__sliding_block_cached__glu_gated_swiglu__decode"
HDR = open("cdna_kernels/" + KN + ".s.ref").read().split("; Override launch")[0]
def f32(x): return "0x%08x" % struct.unpack("<I", struct.pack("<f", x))[0]
LOG2E = 1.4426950408889634
CS = LOG2E

QS, HS, ML, OS, FS = 0x1000, 0x50000, 0x70000, 0x80000, 0xC0000
WS_BYTES = 0x400000
OOB = 0x1000000
R0, R1, R2 = 0, 12544, 12544 + 8704
QL = R2 + 12800; MLL = QL + 384; GL = MLL + 64; SAV = GL + 64; LDS_BYTES = SAV + 1024
sH, sC, sW, sTAG = "s30", "s31", "s32", "s33"
K_, V_, A_, W_, X_, WS_, O_, G_ = "s[36:39]", "s[40:43]", "s[44:47]", "s[48:51]", "s[52:55]", "s[56:59]", "s[60:63]", "s[64:67]"
sPUB1, sQP, sMLP, sMLQ, sOP, sP2, sFP, sRED, sSPIN, sCS, sRHO, sL = ["s%d" % i for i in range(71, 83)]
sXCC, sLOC, sFL, sXM, sAM = "s8", "s3", "s17", "s[20:21]", "s[22:23]"
sG, sHI, sLO = "s9", "s6", "s7"
KSO = ["s70", "s24", "s25", "s26", "s27", "s28", "s29", "s16"]
vKV, vA, vX = "v1", "v2", "v3"
M = [4, 5, 6, 7]; AB = [8, 12]; D = [16, 20, 24]; Q = [28, 32, 36]; S = list(range(40, 48)); P = 48
vWR0, vRD0, vU16, vPOLL, vBP, vF = "v52", "v53", "v54", "v55", "v56", "v57"
T = list(range(58, 64))
KR = [64 + 4*i for i in range(24)]; VR = [160 + 4*i for i in range(24)]
AR = VR[18:24]; WR = KR[0:6]
vW, vWR1, vRD1, vML = "v88", "v89", "v90", "v91"
AB3 = [92, 96, 100]; PO = 104
XX, GG = 208, 216
vG, vL4, vL16 = "v224", "v225", "v226"
vACC, vOUT = "v148", "v149"; OWN, OLD = 150, 152
NADD = 56; SPINMAX = 0x800000; SHIFT = 51
def r4(b): return f"v[{b}:{b+3}]"
def r2(b): return f"v[{b}:{b+1}]"
DPPM = "row_mask:0xf bank_mask:0xf"
MF = "v_mfma_f32_16x16x32_bf16"

class G(Prog):
    def __init__(self, role):
        super().__init__(); self.role = role; self.cold = []; self.bigonly = True
    def C(self, s):
        for l in s.strip("\n").split("\n"): self.L.append("  ; " + l.strip())
    def exec_(self, m):
        if isinstance(m, str): self.I(f"s_mov_b64 exec, {m}")
        elif m == -1: self.I("s_mov_b64 exec, -1")
        elif m < 2**31: self.I(f"s_mov_b64 exec, {hex(m)}")
        elif m & 0xffffffff == 0xffffffff: self.I(f"s_mov_b32 exec_hi, {hex(m >> 32)}")
        else: self.I(f"s_mov_b32 exec_lo, {hex(m & 0xffffffff)}"); self.I(f"s_mov_b32 exec_hi, {hex(m >> 32)}")
    def red_low(self, regs, op="add"):
        for pat in ("quad_perm:[1,0,3,2]", "quad_perm:[2,3,0,1]", "row_half_mirror"):
            for r in regs: self.I(f"v_{op}_f32_dpp v{r}, v{r}, v{r} {pat} {DPPM}")
    def red_up(self, regs, tmps, op="add", do32=True):
        if do32:
            for r, t in zip(regs, tmps): self.I(f"v_permlane32_swap_b32 v{r}, v{t}")
            for r, t in zip(regs, tmps): self.I(f"v_{op}_f32 v{r}, v{r}, v{t}")
        for r, t in zip(regs, tmps): self.I(f"v_permlane16_swap_b32 v{r}, v{t}")
        for r, t in zip(regs, tmps): self.I(f"v_{op}_f32 v{r}, v{r}, v{t}")
        for r in regs: self.I(f"v_{op}_f32_dpp v{r}, v{r}, v{r} row_ror:8 {DPPM}")
    def build_a(self, dst, src):
        for w in range(4): self.I(f"v_and_b32 v{dst+w}, v{src}, v{M[w]}")
    def poll_issue(self, name, soff, mask=-1, voff=vPOLL):
        if mask != -1:
            for t in range(3): self.I(f"v_mov_b32 v{P+t}, 0")
            self.exec_(mask)
        self.vmem(name, f"buffer_load_dwordx4 {r4(P)}, {voff}, {WS_}, {soff} offen sc1")
        if mask != -1: self.exec_(-1)
    def republish(self, lab):
        return ["  ; repeat this wave's first hand-off write-through (once) for readers behind another L2",
                f"  s_cmp_lg_u32 {sFL}, 0", f"  s_cbranch_scc1 {lab}_np", f"  s_mov_b32 {sFL}, 1",
                "  s_mov_b64 s[18:19], exec", "  s_mov_b64 exec, 0xff",
                f"  s_lshl_b32 s34, {sW}, 7", f"  v_add_u32 v{T[4]}, s34, {vU16}",
                f"  ds_read_b128 {r4(T[0])}, v{T[4]} offset:{SAV}", "  s_waitcnt lgkmcnt(0)",
                f"  buffer_store_dwordx4 {r4(T[0])}, {vU16}, {WS_}, {sPUB1} offen sc1",
                "  s_waitcnt vmcnt(0)", "  s_mov_b64 exec, s[18:19]", f"{lab}_np:"]
    def poll_check(self, name, soff, mask=-1, voff=vPOLL):
        lab = f"L_{self.role}_{name}"
        assert name not in self.vm
        if mask != -1: self.exec_(mask)
        self.I(f"{lab}_chk:")
        if name in ("qpoll", "hpoll"):
            self.I(f"v_subrev_u32 v{T[0]}, {sTAG}, v{P+3}")
            self.I(f"v_cmp_lt_u32 vcc, 15, v{T[0]}")
            self.I(f"s_cbranch_vccnz {lab}_retry")
            self.I(f"v_cmp_ne_u32 vcc, {sXCC}, v{T[0]}")
            if name == "qpoll": self.I(f"s_mov_b32 {sLOC}, 1")
            self.I(f"s_cbranch_vccnz {lab}_remote")
            self.I(f"{lab}_back:")
            self.cold += [f"{lab}_remote:"] + self.republish(lab + "_rm") + ([f"  s_mov_b32 {sLOC}, 0"] if name == "qpoll" else []) + [f"  s_branch {lab}_back"]
        else:
            self.I(f"v_cmp_ne_u32 vcc, {sTAG}, v{P+3}")
            self.I(f"s_cbranch_vccnz {lab}_retry")
        if mask != -1: self.exec_(-1)
        self.cold += [f"{lab}_retry:"] + self.republish(lab + "_rt") + [
              f"  buffer_load_dwordx4 {r4(P)}, {voff}, {WS_}, {soff} offen sc1",
              f"  s_add_u32 {sSPIN}, {sSPIN}, 1", f"  s_cmp_gt_u32 {sSPIN}, {SPINMAX}", f"  s_cbranch_scc1 L_{self.role}_exit",
              "  s_waitcnt vmcnt(0)", f"  s_branch {lab}_chk"]
    def lds_put(self, addr, accs):
        self.exec_(sXM)
        for l, d in accs: self.I(f"ds_write_b128 {addr}, {r4(d)} offset:{l*256}")
        self.exec_(-1)
    def loc_store(self, name, txt):
        lab = f"L_{self.role}_{name}"
        self.I(f"s_cbranch_scc0 {lab}_far")
        self.vmem(name, txt)
        self.I(f"{lab}_done:")
        self.cold += [f"{lab}_far:", f"  {txt} sc1", f"  s_branch {lab}_done"]
    def first_handoff(self):
        self.exec_(0xff)
        self.vmem("pub1", f"buffer_store_dwordx4 {r4(P)}, {vU16}, {WS_}, {sPUB1} offen")
        self.I(f"s_lshl_b32 s34, {sW}, 7"); self.I(f"v_add_u32 v{T[4]}, s34, {vU16}")
        self.I(f"ds_write_b128 v{T[4]}, {r4(P)} offset:{SAV}")
        self.exec_(-1)
    def red192(self, pre):
        for t in range(3): self.I(f"ds_read2_b32 {r2(T[0]+2*t)}, {vRD0} offset0:{t} offset1:{192+t}")
        self.I(pre)
        for t in range(3):
            self.I(f"s_waitcnt lgkmcnt({2-t})")
            self.I(f"v_add_f32 v{P+t}, v{T[0]+2*t}, v{T[0]+2*t+1}")
        self.red_up([P, P+1, P+2], T[0:3])
    def transpose_sum(self, n, src=P):
        for t in range(n): self.I(f"ds_bpermute_b32 v{T[t]}, {vBP}, v{src+t}")
        self.I("s_waitcnt lgkmcnt(0)")
        self.red_low(T[0:n])

def srd(g, name, nbytes):
    b = int(name[2:name.index(":")])
    g.I(f"s_mov_b32 s{b+2}, {nbytes}"); g.I(f"s_mov_b32 s{b+3}, 0x20000")
def ptr(g, name, off):
    b = int(name[2:name.index(":")])
    g.I(f"s_load_dwordx2 s[{b}:{b+1}], s[0:1], {off}")

def program(role, scramble=0):
    g = G(role); A = role == "A"
    g.I(f"L_{role}:")
    if not A: g.I("s_cmp_ge_u32 s2, 256"); g.I("s_cbranch_scc1 L_F_exit")
    g.C("h = 4*(wg&7) + ((wg>>3)&3), c = wg>>5, w = wave, a8 = lane>>3, u = lane&7")
    g.I(f"""
    s_and_b32 s34, s2, 7
    s_bfe_u32 {sRHO}, s2, 0x20003
    v_lshrrev_b32 v{T[0]}, 6, v0
    s_lshl2_add_u32 {sH}, s34, {sRHO}
    s_lshr_b32 {sC}, s2, 5
    v_and_b32 {vU16}, 7, v0
    v_lshlrev_b32 {vU16}, 4, {vU16}
    v_readfirstlane_b32 {sW}, v{T[0]}
    v_bfe_u32 v{T[1]}, v0, 3, 3
    """)
    srd(g, X_, 1280)
    a_loads = []
    if A:
        g.C("wq rows 128c + 16w + 2*a8 + t (t = 0,1), columns 192h .. 192h+191")
        srd(g, A_, 640*12288)
        g.I(f"""
        s_mul_i32 s34, {sC}, {128*12288}
        s_mul_i32 s35, {sH}, 384
        s_add_u32 s34, s34, s35
        v_lshrrev_b32 v{T[2]}, 3, v0
        v_mul_u32_u24 {vA}, 24576, v{T[2]}
        v_add3_u32 {vA}, {vA}, {vU16}, s34
        s_lshl_b32 s35, {sC}, 8
        v_lshl_add_u32 {vX}, v{T[2]}, 2, s35
        s_movk_i32 s9, 12288
        s_waitcnt lgkmcnt(0)
        """)
        g.vmem("x", f"buffer_load_dword v{P}, {vX}, {X_}, 0 offen")
        for j in range(6):
            t, l = divmod(j, 3)
            a_loads.append(f"buffer_load_dwordx4 {r4(AR[j])}, {vA}, {A_}, {'s9' if t else '0'} offen offset:{l*128} nt")
    else:
        g.C("""hidden units 64l .. 64l+63 with l = 3*(wg&7) + c - 5; rho = h&3 picks a quarter of the 640 rows
        waves 0-3 read w1, waves 4-7 read w3: rows 160rho + 40(w&3) + 4*a8 + t (t<4) and + 32 + a8""")
        srd(g, A_, 640*3072)
        g.I(f"""
        s_movk_i32 s68, 6144
        s_mul_i32 {sL}, s34, 3
        s_add_u32 {sL}, {sL}, {sC}
        s_sub_u32 {sL}, {sL}, 5
        s_and_b32 s34, {sW}, 3
        s_mul_i32 s34, s34, 40
        s_mul_i32 s35, {sRHO}, 160
        s_add_u32 s34, s34, s35
        s_lshl_b32 s35, s34, 1
        v_lshl_add_u32 {vX}, v{T[1]}, 3, s35
        v_lshl_add_u32 v{T[3]}, v{T[1]}, 1, s35
        s_mul_i32 s34, s34, 3072
        s_lshl_b32 s35, {sL}, 7
        s_add_u32 s34, s34, s35
        v_mul_u32_u24 v{T[2]}, 3072, v{T[1]}
        v_add_u32 v{T[4]}, s34, {vU16}
        v_lshl_add_u32 {vA}, v{T[2]}, 2, v{T[4]}
        v_add_u32 v{Q[0]+2}, v{T[2]}, v{T[4]}
        s_mov_b32 s9, {32*3072}
        s_cmp_ge_u32 {sW}, 4
        s_waitcnt lgkmcnt(0)
        s_cselect_b32 s44, s18, s16
        s_cselect_b32 s45, s19, s17
        """)
        g.vmem("x0", f"buffer_load_dwordx2 {r2(P)}, {vX}, {X_}, 0 offen")
        g.vmem("x", f"buffer_load_ushort v{P+2}, v{T[3]}, {X_}, 0 offen offset:64")
        for t in range(4):
            a_loads.append(f"buffer_load_dwordx4 {r4(AR[t])}, {vA}, {A_}, {'s68' if t//2 else '0'} offen offset:{(t%2)*3072} nt")
        a_loads.append(f"buffer_load_dwordx4 {r4(AR[4])}, v{Q[0]+2}, {A_}, s9 offen nt")
    nA = len(a_loads); nW = 6 if A else 3
    seq = [f"A{j}" for j in range(nA)] + [f"K{j}" for j in range(24)] + [f"V{j}" for j in range(24)] + [f"W{j}" for j in range(nW)]
    pos = [0]; issued = set()
    def issue():
        nm = seq[pos[0]]; pos[0] += 1; issued.add(nm); j = int(nm[1:])
        if nm[0] == "A": g.vmem(nm, a_loads[j])
        elif nm[0] == "W":
            if A: g.vmem(nm, f"buffer_load_dwordx4 {r4(WR[j])}, {vW}, {W_}, 0 offen offset:{(j//2)*1280 + (j%2)*128} nt")
            else: g.vmem(nm, f"buffer_load_dwordx4 {r4(WR[j])}, {('v%d' % AB3[1]) if j == 2 else vW}, {W_}, 0 offen offset:{j*128} nt")
        else:
            reg, sr = (KR[j], K_) if nm[0] == "K" else (VR[j], V_)
            g.vmem(nm, f"buffer_load_dwordx4 {r4(reg)}, {vKV}, {sr}, {KSO[j//3]} offen offset:{(j%3)*128} nt")
    for _ in range(3): issue()
    g.C("remaining set-up runs under the first loads; ws[0] only seeds this launch's hand-off tag")
    g.I(f"s_load_dword {sTAG}, s[56:57], 0")
    ptr(g, V_, 16); ptr(g, W_, 32 if A else 64); ptr(g, O_, 80)
    if not A: ptr(g, G_, 72)
    g.I(f"""
    s_mul_i32 s34, {sH}, 12582912
    s_add_u32 s34, s34, {28672*384}
    v_mul_u32_u24 {vKV}, 384, v{T[1]}
    v_add3_u32 {vKV}, {vKV}, {vU16}, s34
    """)
    srd(g, K_, 402653184); srd(g, V_, 402653184); srd(g, WS_, WS_BYTES); srd(g, W_, 6144*1280 if A else 1536*1280); srd(g, O_, 1280)
    if not A: srd(g, G_, 1280)
    g.I(f"""
    s_mov_b32 {sSPIN}, 0
    s_mov_b32 {sFL}, 0
    s_getreg_b32 {sXCC}, hwreg(HW_REG_XCC_ID, 0, 4)
    s_mov_b32 {sCS}, {f32(CS)}
    s_mov_b32 s20, 0x00ff00ff
    s_mov_b32 s21, 0xff00ff00
    """)
    g.C("lane masks that place one bf16 coefficient at element u of an MFMA A fragment")
    g.I(f"""
    v_and_b32 v{T[0]}, 1, v0
    v_lshlrev_b32 v{T[0]}, 4, v{T[0]}
    v_mov_b32 v{T[2]}, 0xffff
    v_lshlrev_b32 v{T[2]}, v{T[0]}, v{T[2]}
    v_bfe_u32 v{T[0]}, v0, 1, 2
    """)
    for w in range(4): g.I(f"v_cmp_eq_u32 s[{22+2*w}:{23+2*w}], {w}, v{T[0]}")
    for w in range(4): g.I(f"v_cndmask_b32 v{M[w]}, 0, v{T[2]}, s[{22+2*w}:{23+2*w}]")
    g.C("LDS and hand-off slot addresses")
    g.I(f"""
    v_lshl_add_u32 {vPOLL}, v{T[1]}, 10, {vU16}
    v_lshlrev_b32 {vBP}, 1, {vU16}
    v_lshl_add_u32 {vBP}, v{T[1]}, 2, {vBP}
    v_bfe_u32 v{T[0]}, v0, 4, 1
    v_lshlrev_b32 v{T[0]}, 4, v{T[0]}
    v_lshl_add_u32 v{T[0]}, {vU16}, 1, v{T[0]}
    v_bfe_u32 v{T[2]}, v0, 5, 1
    s_mul_i32 s34, {sW}, {392*4}
    v_mul_u32_u24 {vWR0}, 768, v{T[2]}
    v_add3_u32 {vWR0}, {vWR0}, v{T[0]}, s34
    s_mul_i32 s34, {sW}, 96
    v_mul_u32_u24 {vRD0}, {392*4}, v{T[1]}
    v_and_b32 v{T[3]}, 7, v0
    v_mul_u32_u24 v{T[3]}, 12, v{T[3]}
    v_add3_u32 {vRD0}, {vRD0}, v{T[3]}, s34
    s_lshl_b32 s34, {sW}, 7
    s_lshl_b32 s35, {sH}, 13
    s_add_u32 s35, s35, s34
    s_add_u32 {sQP}, s35, {QS}
    s_add_u32 {sP2}, s35, {OS}
    s_lshl_b32 s35, {sC}, 10
    s_add_u32 {sPUB1}, {sQP}, s35
    s_add_u32 {sOP}, {sP2}, s35
    s_lshl_b32 s35, {sH}, 10
    s_add_u32 {sMLQ}, s35, {ML}
    s_lshl_b32 s35, {sC}, 7
    s_add_u32 {sMLP}, {sMLQ}, s35
    """)
    if not A:
        g.I(f"""
        s_lshl_b32 s35, {sL}, 12
        s_add_u32 s35, s35, s34
        s_add_u32 {sP2}, s35, {HS}
        s_lshl_b32 s35, {sRHO}, 10
        s_add_u32 {sPUB1}, {sP2}, s35
        s_mul_i32 s34, {sW}, {136*4}
        s_add_u32 s34, s34, {R1}
        v_lshlrev_b32 v{Q[0]}, 8, v{T[2]}
        v_add3_u32 v{Q[0]}, v{Q[0]}, v{T[0]}, s34
        s_lshl_b32 s34, {sW}, 5
        s_add_u32 s34, s34, {R1}
        v_mul_u32_u24 v{Q[0]+1}, {136*4}, v{T[1]}
        v_lshrrev_b32 v{T[3]}, 2, {vU16}
        v_add3_u32 v{Q[0]+1}, v{Q[0]+1}, v{T[3]}, s34
        s_cmp_eq_u32 {sW}, 0
        s_cselect_b32 s34, 0, {OOB}
        v_and_b32 {vL16}, 63, v0
        v_lshl_add_u32 {vL4}, {vL16}, 2, s34
        v_lshl_add_u32 {vL16}, {vL16}, 4, s34
        """)
    g.C(f"step t of this wave covers the 8 keys of block (64t + 8w + c + {SHIFT}h) mod 512 of the head's window")
    g.I(f"s_lshl3_add_u32 s35, {sW}, {sC}"); g.I(f"s_mul_i32 s34, {sH}, {SHIFT}"); g.I("s_add_u32 s35, s35, s34")
    for t in range(8):
        if t: g.I("s_add_u32 s35, s35, 64")
        g.I("s_and_b32 s34, s35, 511"); g.I(f"s_mul_i32 {KSO[t]}, s34, 3072")
    for t in range(8): g.I(f"v_mov_b32 v{S[t]}, 0")
    g.I("s_mov_b32 s14, 0x01000100"); g.I("s_mov_b32 s15, 0x03020302")
    g.wait("x")
    st = dict(aj=0, pub1=False, q=False, qi=False, kt=0, sm=False, vj=0, mli=not A, ml=not A, hi=False, h=A, addr=False, gi=False, g=A)
    landed = lambda x: x in issued and x not in g.vm
    gone = lambda x: x not in g.vm
    g.C("x @ W on this slice: masked-diagonal A fragment (x[row] at element u) times the raw rows as B")
    for t in range(2):
        g.I(f"v_perm_b32 v{T[0]}, v{P}, v{P}, s{14+t}"); g.build_a(AB[t], T[0])
    def a_mfma(j):
        if A:
            t, l = divmod(j, 3)
            g.I(f"{MF} {r4(D[l])}, {r4(AB[t])}, {r4(AR[j])}, {r4(D[l]) if t else 0}")
        else:
            g.I(f"{MF} {r4(D[0])}, {r4(AB[j%2])}, {r4(AR[j])}, {r4(D[0]) if j else 0}")
            if j + 2 < 5:
                t = j + 2
                g.I(f"v_perm_b32 v{T[0]}, v{P+t//2}, v{P+t//2}, s{14+t%2}"); g.build_a(AB[t%2], T[0])
    def pub1():
        g.C("cross-wave sum in LDS, then publish {values, tag + XCC id} granules (plain store: stays in this L2;\na reader behind another L2 makes the wave repeat it write-through, see the *_remote / *_retry blocks)")
        g.lds_put(vWR0 if A else f"v{Q[0]}", list(enumerate(D)) if A else [(0, D[0])])
        g.I("s_waitcnt lgkmcnt(0)"); g.I(f"s_add_u32 {sTAG}, {sTAG}, 0x9e3779b9"); g.I("s_barrier")
        tagx = f"s_add_u32 s34, {sTAG}, {sXCC}\nv_mov_b32 v{P+3}, s34"
        if A: g.red192(tagx)
        else:
            g.I(f"ds_read2_b32 {r2(T[0])}, v{Q[0]+1} offset0:0 offset1:64")
            g.I(tagx); g.I(f"v_mov_b32 v{P+2}, 0")
            g.I("s_waitcnt lgkmcnt(0)")
            g.I(f"v_add_f32 v{P}, v{T[0]}, v{T[1]}")
            g.red_up([P], [T[0]], do32=False)
            g.I(f"v_permlane32_swap_b32 v{P}, v{P+1}")
        g.first_handoff()
        g.I(f"s_lshr_b32 {sHI}, {sTAG}, 26\ns_or_b32 {sHI}, {sHI}, 0x43300000\ns_lshl_b32 {sLO}, {sTAG}, 6")
        if not A:
            g.C("40 waves reset the output accumulator cells {f64 sum = 0, f64 2^52 + 64*tag} (others are out of range)")
            g.I(f"""
            s_lshl_b32 s34, {sL}, 1
            s_add_u32 s34, s34, {sRHO}
            s_sub_u32 s34, s34, 2
            s_cmp_ge_u32 {sRHO}, 2
            s_cselect_b32 s34, s34, 64
            s_cmp_eq_u32 {sW}, 1
            s_cselect_b32 s34, s34, 64
            s_cmp_lt_u32 s34, 40
            s_cselect_b32 s34, s34, {OOB >> 10}
            s_lshl_b32 s34, s34, 10
            v_bfe_u32 v{T[4]}, v0, 2, 2
            v_and_b32 v{T[5]}, 3, v0
            v_lshlrev_b32 v{T[5]}, 4, v{T[5]}
            v_lshl_add_u32 v{T[4]}, v{T[4]}, 8, v{T[5]}
            v_add_u32 v{T[4]}, s34, v{T[4]}
            v_mov_b32 v{T[0]}, 0
            v_mov_b32 v{T[1]}, 0
            v_mov_b32 v{T[2]}, {sLO}
            v_mov_b32 v{T[3]}, {sHI}
            s_mov_b32 s34, {FS}
            """)
            g.exec_(0xffff)
            g.vmem("init", f"buffer_store_dwordx4 {r4(T[0])}, v{T[4]}, {WS_}, s34 offen sc1")
            g.exec_(-1)
    def consume_q():
        g.C("q = sum of the five partials, rounded to bf16, shared through LDS")
        g.poll_check("qpoll", sQP, mask=0xffffffffff)
        g.transpose_sum(3)
        g.I(f"""
        v_cvt_pk_bf16_f32 v{T[0]}, v{T[0]}, v{T[1]}
        v_cvt_pk_bf16_f32 v{T[1]}, v{T[2]}, v{T[2]}
        v_lshrrev_b32 v{T[2]}, 3, v0
        v_mul_u32_u24 v{T[2]}, 6, v{T[2]}
        """)
        g.exec_(0x0101010101010101)
        g.I(f"""
        ds_write_b16 v{T[2]}, v{T[0]} offset:{QL}
        ds_write_b16_d16_hi v{T[2]}, v{T[0]} offset:{QL+2}
        ds_write_b16 v{T[2]}, v{T[1]} offset:{QL+4}
        """)
        g.exec_(-1)
        g.I("s_waitcnt lgkmcnt(0)"); g.I("s_barrier")
        for l in range(3): g.I(f"ds_read_b128 {r4(Q[l])}, {vU16} offset:{QL + l*128}")
        g.I("s_waitcnt lgkmcnt(0)")
    def k_octets(ts):
        g.C(f"scores of key blocks {ts}: bf16(bf16(q.k) / sqrt(192))")
        for l in range(3):
            for e in range(4):
                for t in ts: g.I(f"v_dot2c_f32_bf16 v{S[t]}, v{KR[3*t+l]+e}, v{Q[l]+e}")
        g.red_low([S[t] for t in ts])
        a, b = S[ts[0]], S[ts[-1]]
        for k in range(2):
            g.I(f"v_cvt_pk_bf16_f32 v{a}, v{a}, v{b}")
            if b != a: g.I(f"v_and_b32 v{b}, 0xffff0000, v{a}")
            g.I(f"v_lshlrev_b32 v{a}, 16, v{a}")
            if k == 0:
                for r in sorted({a, b}): g.I(f"v_mul_f32 v{r}, {f32(192.0 ** -0.5)}, v{r}")
    def softmax():
        g.C("p = exp2(log2(e)*(s - m_wave)), then rescaled to the workgroup maximum; {max, sum} of the workgroup is published")
        g.I(f"""
        v_max3_f32 v{T[0]}, v{S[0]}, v{S[1]}, v{S[2]}
        v_max3_f32 v{T[1]}, v{S[3]}, v{S[4]}, v{S[5]}
        v_max3_f32 v{T[0]}, v{T[0]}, v{S[6]}, v{S[7]}
        v_max_f32 v{T[0]}, v{T[0]}, v{T[1]}
        """)
        g.red_up([T[0]], [T[1]], op="max")
        g.I(f"""
        v_mul_f32 v{P}, {sCS}, v{T[0]}
        s_lshl_b32 s35, {sW}, 3
        v_readfirstlane_b32 s34, v{P}
        v_mov_b32 v{T[4]}, s35
        v_lshrrev_b32 v{T[5]}, 1, {vU16}
        v_mov_b32 {vF}, s34
        """)
        for t in range(8): g.I(f"v_fma_f32 v{S[t]}, v{S[t]}, {sCS}, -{vF}")
        for t in range(8): g.I(f"v_exp_f32 v{S[t]}, v{S[t]}")
        g.I(f"""
        v_add_f32 v{T[0]}, v{S[0]}, v{S[1]}
        v_add_f32 v{T[1]}, v{S[2]}, v{S[3]}
        v_add_f32 v{T[2]}, v{S[4]}, v{S[5]}
        v_add_f32 v{T[3]}, v{S[6]}, v{S[7]}
        v_add_f32 v{T[0]}, v{T[0]}, v{T[1]}
        v_add_f32 v{T[2]}, v{T[2]}, v{T[3]}
        v_add_f32 v{P+1}, v{T[0]}, v{T[2]}
        """)
        g.red_up([P+1], [T[1]])
        g.exec_(1)
        g.I(f"ds_write_b64 v{T[4]}, {r2(P)} offset:{MLL}")
        g.exec_(-1)
        g.I("s_waitcnt lgkmcnt(0)"); g.I("s_barrier")
        g.I(f"ds_read_b64 {r2(T[0])}, v{T[5]} offset:{MLL}")
        if not A: g.I(f"v_mov_b32 v{T[2]}, 0"); g.I(f"ds_read_b32 v{P+2}, v{T[2]} offset:{GL}")
        g.I(f"v_mov_b32 v{P+3}, {sTAG}")
        g.I(f"s_cmp_eq_u32 {sW}, 0"); g.I(f"s_cselect_b32 s34, 0, {OOB}"); g.I(f"v_mov_b32 v{T[4]}, s34")
        g.I("s_waitcnt lgkmcnt(0)")
        g.I(f"v_mov_b32 v{P}, v{T[0]}")
        g.red_low([P], op="max")
        g.I(f"""
        v_sub_f32 v{T[0]}, v{T[0]}, v{P}
        v_sub_f32 {vF}, {vF}, v{P}
        v_exp_f32 v{T[0]}, v{T[0]}
        v_exp_f32 {vF}, {vF}
        v_mul_f32 v{P+1}, v{T[0]}, v{T[1]}
        """)
        for k, pat in enumerate(("quad_perm:[1,0,3,2]", "quad_perm:[2,3,0,1]", "row_half_mirror", None)):
            for t in (2*k, 2*k+1): g.I(f"v_mul_f32 v{S[t]}, v{S[t]}, {vF}")
            if pat: g.I(f"v_add_f32_dpp v{P+1}, v{P+1}, v{P+1} {pat} {DPPM}")
        g.exec_(1)
        g.I(f"s_cmp_lg_u32 {sLOC}, 0")
        g.loc_store("pubml", f"buffer_store_dwordx4 {r4(P)}, v{T[4]}, {WS_}, {sMLP} offen")
        g.exec_(-1)
        for t in range(8): g.I(f"v_cvt_pk_bf16_f32 v{S[t]}, v{S[t]}, v{S[t]}")
        if not A: g.I(f"v_sub_f32 {vF}, 1.0, v{P+2}"); g.I(f"v_cvt_pk_bf16_f32 {vF}, {vF}, {vF}"); g.I(f"v_lshlrev_b32 {vF}, 16, {vF}")
        g.build_a(AB[0], S[0])
        g.C("o += p @ V, same masked-diagonal MFMA form")
    def tail_addr():
        NC, SP, RB = (128, 528, R1) if A else (192, 784, R2)
        g.C("addresses of the output projection stage")
        g.I(f"""
        v_bfe_u32 v{T[1]}, v0, 3, 3
        v_bfe_u32 v{T[0]}, v0, 4, 1
        v_lshlrev_b32 v{T[0]}, 4, v{T[0]}
        v_lshl_add_u32 v{T[0]}, {vU16}, 1, v{T[0]}
        v_bfe_u32 v{T[2]}, v0, 5, 1
        s_lshr_b32 s34, {sW}, 1
        s_mul_i32 s34, s34, {SP*4}
        s_and_b32 s35, {sW}, 1
        s_mul_i32 s35, s35, {NC*8}
        s_add_u32 s34, s34, s35
        s_add_u32 s34, s34, {RB}
        v_mul_u32_u24 {vWR1}, {NC*4}, v{T[2]}
        v_add3_u32 {vWR1}, {vWR1}, v{T[0]}, s34
        v_and_b32 v{T[3]}, 1, v0
        v_lshl_add_u32 v{T[3]}, v{T[2]}, 1, v{T[3]}
        v_mul_u32_u24 {vRD1}, {SP*4}, v{T[3]}
        v_and_b32 v{T[3]}, 30, v0
        s_lshl_b32 s34, {sW}, 6
        s_add_u32 s34, s34, {RB}
        v_lshl_add_u32 {vRD1}, v{T[3]}, 1, {vRD1}
        v_add_u32 {vRD1}, s34, {vRD1}
        v_lshl_add_u32 {vOUT}, v{T[2]}, 8, v{T[3]}
        v_lshrrev_b32 v{T[3]}, 1, {vU16}
        v_lshl_add_u32 {vACC}, v{T[1]}, 8, v{T[3]}
        v_mul_u32_u24 v{T[3]}, {7*1024}, v{T[2]}
        v_add_u32 {vACC}, {vACC}, v{T[3]}
        v_mov_b32 v{OLD}, 0
        v_mov_b32 v{OLD+1}, 0x3ff00000
        """)
        if A:
            g.C("wo rows 192h + 24w + 3*a8 + t (t<3), columns 128c .. 128c+127")
            g.I(f"""
            v_lshlrev_b32 {vML}, 7, v{T[1]}
            s_mul_i32 s34, {sH}, 192
            s_mul_i32 s35, {sW}, 24
            s_add_u32 s34, s34, s35
            s_mul_i32 s34, s34, 1280
            s_lshl_b32 s35, {sC}, 8
            s_add_u32 s34, s34, s35
            v_mul_u32_u24 {vW}, 3840, v{T[1]}
            v_add3_u32 {vW}, {vW}, {vU16}, s34
            s_lshl3_add_u32 {sRED}, {sC}, {sW}
            s_mov_b32 s22, -1
            s_mov_b32 s23, 0
            """)
        else:
            g.C("w2 rows 64l + 8w + a8, columns from 0 / 192 / 384 / 512 (192,192,128,128 wide) by rho")
            g.I(f"""
            s_mul_i32 {sRED}, {sRHO}, 12
            s_min_u32 {sRED}, {sRED}, 32
            s_lshl_b32 s34, {sL}, 6
            s_lshl_b32 s35, {sW}, 3
            s_add_u32 s34, s34, s35
            s_mul_i32 s34, s34, 1280
            s_lshl_b32 s35, {sRED}, 5
            s_add_u32 s34, s34, s35
            v_mul_u32_u24 {vW}, 1280, v{T[1]}
            v_add3_u32 {vW}, {vW}, {vU16}, s34
            s_cmp_ge_u32 {sRHO}, 2
            s_cselect_b32 s34, {OOB}, 0
            s_cselect_b32 s23, 0, -1
            v_add_u32 v{AB3[1]}, s34, {vW}
            s_cmp_ge_u32 {sW}, 4
            s_cselect_b32 s23, 0, s23
            s_mov_b32 s22, -1
            s_add_u32 {sRED}, {sRED}, {sW}
            """)
        g.I(f"s_lshl_b32 {sFP}, {sRED}, 10\ns_add_u32 {sFP}, {sFP}, {FS}\ns_lshl_b32 {sRED}, {sRED}, 5")
    def consume_ml():
        g.C("softmax weight of each of the 8 partial o's: exp2(m_c - M) / L; the gate g rides in an F granule")
        g.poll_check("mlpoll", sMLQ, voff=vML)
        g.I(f"v_mov_b32 v{T[0]}, v{P}")
        g.I(f"v_readlane_b32 {sG}, v{P+2}, 40")
        g.red_up([T[0]], [T[1]], op="max")
        g.I(f"""
        v_readfirstlane_b32 s34, v{T[0]}
        v_subrev_f32 {vF}, s34, v{P}
        v_exp_f32 {vF}, {vF}
        v_mul_f32 v{T[0]}, {vF}, v{P+1}
        """)
        g.red_up([T[0]], [T[1]])
        g.I(f"v_rcp_f32 v{T[0]}, v{T[0]}\nv_readfirstlane_b32 s34, v{T[0]}\nv_mul_f32 {vF}, s34, {vF}")
    def consume_h():
        g.C("h = silu(gate) * up from the four row-quarter partials")
        g.poll_check("hpoll", sP2, mask=0xffffffff)
        g.transpose_sum(2)
        g.I(f"""
        v_cvt_pk_bf16_f32 v{T[0]}, v{T[0]}, v{T[1]}
        v_and_b32 v{T[1]}, 0xffff0000, v{T[0]}
        v_lshlrev_b32 v{T[0]}, 16, v{T[0]}
        v_mul_f32 v{T[2]}, {f32(-LOG2E)}, v{T[0]}
        v_exp_f32 v{T[2]}, v{T[2]}
        v_add_f32 v{T[2]}, 1.0, v{T[2]}
        v_rcp_f32 v{T[2]}, v{T[2]}
        v_mul_f32 v{T[0]}, v{T[0]}, v{T[2]}
        v_cvt_pk_bf16_f32 v{T[0]}, v{T[0]}, v{T[0]}
        v_lshlrev_b32 v{T[0]}, 16, v{T[0]}
        v_mul_f32 v{T[0]}, v{T[0]}, v{T[1]}
        v_cvt_pk_bf16_f32 v{T[0]}, v{T[0]}, v{T[0]}
        """)
        g.build_a(AB3[0], T[0])
    def g_issue():
        g.C("gate operands (in range for wave 0 only)")
        g.vmem("gx4", f"buffer_load_dwordx4 {r4(XX)}, {vL16}, {X_}, 0 offen")
        g.vmem("gx1", f"buffer_load_dword v{XX+4}, {vL4}, {X_}, 0 offen offset:1024")
        g.vmem("gg4", f"buffer_load_dwordx4 {r4(GG)}, {vL16}, {G_}, 0 offen")
        g.vmem("gg1", f"buffer_load_dword v{GG+4}, {vL4}, {G_}, 0 offen offset:1024")
    def g_compute():
        g.C("g = sigmoid(sum(x * gate_w)) -> LDS")
        g.I(f"s_cmp_lg_u32 {sW}, 0"); g.I("s_cbranch_scc1 L_F_nog")
        g.I(f"v_mov_b32 {vG}, 0")
        for k in range(5):
            g.I(f"""
            v_lshlrev_b32 v{T[1]}, 16, v{XX+k}
            v_lshlrev_b32 v{T[2]}, 16, v{GG+k}
            v_and_b32 v{XX+k}, 0xffff0000, v{XX+k}
            v_and_b32 v{GG+k}, 0xffff0000, v{GG+k}
            v_mul_f32 v{T[1]}, v{T[1]}, v{T[2]}
            v_mul_f32 v{T[2]}, v{XX+k}, v{GG+k}
            v_cvt_pk_bf16_f32 v{T[1]}, v{T[1]}, v{T[2]}
            v_lshlrev_b32 v{T[2]}, 16, v{T[1]}
            v_and_b32 v{T[1]}, 0xffff0000, v{T[1]}
            v_add_f32 {vG}, {vG}, v{T[2]}
            v_add_f32 {vG}, {vG}, v{T[1]}
            """)
        gi = int(vG[1:])
        g.red_low([gi]); g.red_up([gi], [T[1]])
        g.I(f"""
        v_cvt_pk_bf16_f32 {vG}, {vG}, {vG}
        v_lshlrev_b32 {vG}, 16, {vG}
        v_mul_f32 {vG}, {f32(-LOG2E)}, {vG}
        v_exp_f32 {vG}, {vG}
        v_add_f32 {vG}, 1.0, {vG}
        v_rcp_f32 {vG}, {vG}
        v_cvt_pk_bf16_f32 {vG}, {vG}, {vG}
        v_lshlrev_b32 {vG}, 16, {vG}
        s_mov_b64 exec, 1
        ds_write_b32 {vL4}, {vG} offset:{GL}
        s_mov_b64 exec, -1
        L_F_nog:
        """)
    def v_mfma(j):
        t, l = divmod(j, 3)
        g.I(f"{MF} {r4(D[l])}, {r4(AB[t%2])}, {r4(VR[j])}, {r4(D[l]) if t else 0}")
        if l == 0 and t < 7: g.build_a(AB[(t+1)%2], S[t+1])
    def work():
        while st["aj"] < nA and landed(f"A{st['aj']}"):
            a_mfma(st["aj"]); st["aj"] += 1
        if st["aj"] == nA and not st["pub1"]: pub1(); st["pub1"] = True
        if not st["g"] and not st["gi"] and "K7" in issued: g_issue(); st["gi"] = True
        elif st["gi"] and not st["g"] and gone("gg1"): g_compute(); st["g"] = True
        if not st["qi"] and "K17" in issued:
            assert st["g"]
            g.poll_issue("qpoll", sQP, mask=0xffffffffff); st["qi"] = True
        elif st["qi"] and not st["q"] and gone("qpoll"): consume_q(); st["q"] = True
        elif st["q"] and st["kt"] < 8:
            ts = [t for t in range(st["kt"], min(st["kt"]+2, 8)) if landed(f"K{3*t+2}")]
            if ts: k_octets(ts); st["kt"] = ts[-1] + 1
        if st["kt"] == 8 and not st["sm"]: softmax(); st["sm"] = True
        elif st["sm"] and not st["addr"]: tail_addr(); st["addr"] = True
        elif st["addr"] and not st["h"] and not st["hi"]: g.poll_issue("hpoll", sP2, mask=0xffffffff); st["hi"] = True
        elif st["hi"] and not st["h"] and gone("hpoll"): consume_h(); st["h"] = True
        if st["addr"] and not st["mli"] and "V14" in issued: g.poll_issue("mlpoll", sMLQ, voff=vML); st["mli"] = True
        elif st["mli"] and not st["ml"] and gone("mlpoll"): consume_ml(); st["ml"] = True
        if st["sm"]:
            while st["vj"] < 24 and landed(f"V{st['vj']}"): v_mfma(st["vj"]); st["vj"] += 1
    while st["vj"] < 24:
        g.cap(0); issue()
        while pos[0] < len(seq) and int(seq[pos[0]][1:]) % 3: issue()
        work(); work()
    assert st["ml"] and st["h"] and st["g"]
    g.C("publish this workgroup's partial o (L2-resident when every reader shares this L2, else write-through)")
    g.lds_put(vWR0, list(enumerate(D)))
    g.I("s_waitcnt lgkmcnt(0)"); g.I("s_barrier")
    g.red192(f"v_mov_b32 v{P+3}, {sTAG}\ns_cmp_lg_u32 {sLOC}, 0")
    g.exec_(0xff)
    g.loc_store("pubo", f"buffer_store_dwordx4 {r4(P)}, {vU16}, {WS_}, {sOP} offen")
    g.exec_(-1)
    while pos[0] < len(seq): issue()
    X, Y = AB3[0], AB3[1]
    if A:
        g.C("gather the 8 partial o's of rows 24w .. 24w+23, weight, sum, multiply with wo")
        g.wait("W3")
        g.I("L_A_opoll:")
        g.I(f"buffer_load_dwordx4 {r4(PO)}, {vPOLL}, {WS_}, {sP2} offen sc1")
        g.I(f"s_add_u32 {sSPIN}, {sSPIN}, 1\ns_cmp_gt_u32 {sSPIN}, {SPINMAX}\ns_cbranch_scc1 L_A_exit")
        g.I("s_waitcnt vmcnt(0)"); g.vm = []
        g.I(f"v_cmp_ne_u32 vcc, {sTAG}, v{PO+3}")
        for t in range(3): g.I(f"v_mul_f32 v{PO+t}, v{PO+t}, {vF}")
        g.I("s_cbranch_vccnz L_A_opoll")
        g.transpose_sum(3, src=PO)
        for t in range(3): g.I(f"v_cvt_pk_bf16_f32 v{T[t]}, v{T[t]}, v{T[t]}")
        g.build_a(AB3[0], T[0]); g.build_a(AB3[1], T[1])
        for l in range(2): g.I(f"{MF} {r4(D[l])}, {r4(AB3[0])}, {r4(WR[l])}, 0")
        g.build_a(AB3[2], T[2])
        for t in range(1, 3):
            for l in range(2): g.I(f"{MF} {r4(D[l])}, {r4(AB3[t])}, {r4(WR[2*t+l])}, {r4(D[l])}")
        g.lds_put(vWR1, [(0, D[0]), (1, D[1])])
        g.I("s_waitcnt lgkmcnt(0)"); g.I("s_barrier")
        g.I(f"""
        ds_read2st64_b32 {r2(X)}, {vRD1} offset0:0 offset1:2
        ds_read2st64_b32 {r2(X+2)}, {vRD1} offset0:4 offset1:6
        s_waitcnt lgkmcnt(1)
        v_add_f32 v{X}, v{X}, v{X+1}
        s_waitcnt lgkmcnt(0)
        v_add_f32 v{X+2}, v{X+2}, v{X+3}
        v_add_f32 v{X}, v{X}, v{X+2}
        v_permlane32_swap_b32 v{X}, v{X+1}
        v_add_f32 v{X}, v{X}, v{X+1}
        v_add_f32_dpp v{X}, v{X}, v{X} quad_perm:[1,0,3,2] {DPPM}
        s_mov_b64 exec, 0x55555555
        v_mul_f32 v{X}, {sG}, v{X}
        """)
    else:
        g.C("h @ w2 on this slice")
        for l in range(3):
            g.wait(f"W{l}")
            g.I(f"{MF} {r4(D[l])}, {r4(AB3[0])}, {r4(WR[l])}, 0")
        g.lds_put(vWR1, list(enumerate(D)))
        g.I("s_waitcnt lgkmcnt(0)"); g.I("s_barrier")
        g.I(f"""
        ds_read2st64_b32 {r2(X)}, {vRD1} offset0:0 offset1:3
        ds_read2st64_b32 {r2(X+2)}, {vRD1} offset0:6 offset1:9
        ds_read2st64_b32 {r2(Y)}, {vRD1} offset0:2 offset1:5
        ds_read2st64_b32 {r2(Y+2)}, {vRD1} offset0:8 offset1:11
        s_waitcnt lgkmcnt(0)
        """)
        for b in (X, Y): g.I(f"v_add_f32 v{b}, v{b}, v{b+1}"); g.I(f"v_add_f32 v{b+2}, v{b+2}, v{b+3}")
        for b in (X, Y): g.I(f"v_add_f32 v{b}, v{b}, v{b+2}")
        g.I(f"""
        v_permlane32_swap_b32 v{X}, v{Y}
        v_add_f32 v{X}, v{X}, v{Y}
        v_add_f32_dpp v{X}, v{X}, v{X} quad_perm:[1,0,3,2] {DPPM}
        s_mov_b32 exec_lo, 0x55555555
        s_mov_b32 exec_hi, 0x55555555
        v_mul_f32 v{X}, v{X}, {vF}
        """)
    g.C(f"""final reduction: one returning f64 add per 16-byte cell; even lanes add the gated partial, odd lanes add 1.0 to
    the cell's arrival counter.  The wave whose add is the last of the {NADD} owns the total and writes that output element.""")
    g.I(f"""
    v_cvt_f64_f32 {r2(OLD)}, v{X}
    s_mov_b64 exec, {sAM}
    L_{role}_acc:
    buffer_atomic_add_f64 {r2(OLD)}, {vACC}, {WS_}, {sFP} offen sc0 sc1
    v_cvt_f64_f32 {r2(OWN)}, v{X}
    s_mov_b32 s4, 0xaaaaaaaa
    s_mov_b32 s5, 0xaaaaaaaa
    s_add_u32 {sSPIN}, {sSPIN}, 1
    s_waitcnt vmcnt(0)
    v_add_f64 {r2(T[0])}, {r2(OLD)}, {r2(OWN)}
    v_subrev_u32 v{T[2]}, {sLO}, v{OLD}
    v_cmp_ne_u32 s[18:19], {sHI}, v{OLD+1}
    v_cvt_f32_f64 v{T[0]}, {r2(T[0])}
    v_cmp_lt_u32 s[14:15], {NADD-1}, v{T[2]}
    v_cmp_eq_u32 vcc, {NADD-1}, v{T[2]}
    v_cvt_pk_bf16_f32 v{T[0]}, v{T[0]}, v{T[0]}
    s_andn2_b64 vcc, vcc, s[18:19]
    s_and_b64 vcc, vcc, s[4:5]
    s_lshr_b64 exec, vcc, 1
    s_cbranch_execz L_{role}_notlast
    buffer_store_short v{T[0]}, {vOUT}, {O_}, {sRED} offen
    s_cmp_lg_u32 {sRED}, 0
    s_cbranch_scc1 L_{role}_notlast
    s_and_b64 exec, exec, 1
    s_cbranch_execz L_{role}_notlast
    """)
    g.C("every workgroup has read ws[0] by now: retire this launch's tag")
    g.I(f"""
    v_mov_b32 v{T[1]}, {sTAG}
    buffer_store_dword v{T[1]}, {vOUT}, {WS_}, 0 offen sc1
    L_{role}_notlast:
    s_or_b64 s[18:19], s[18:19], s[14:15]
    s_and_b64 s[18:19], s[18:19], s[4:5]
    s_cbranch_scc1 L_{role}_again
    s_endpgm
    """)
    g.cold += [f"L_{role}_again:", "  ; a cell was not reset yet: the add is void (the reset overwrites it), so repeat it",
               "  s_mov_b64 exec, s[18:19]", f"  v_mov_b32 v{OLD}, 0", f"  v_mov_b32 v{OLD+1}, 0x3ff00000",
               "  s_lshr_b64 exec, s[18:19], 1", f"  v_cvt_f64_f32 {r2(OLD)}, v{X}", "  s_or_b64 exec, exec, s[18:19]",
               f"  s_cmp_gt_u32 {sSPIN}, {SPINMAX}", f"  s_cbranch_scc0 L_{role}_acc"]
    return g.L + ["  ; ---- rarely taken paths"] + g.cold + [f"L_{role}_exit:", "  s_endpgm"]

DOC = f"""; One launch, 256 workgroups (one per CU) x 8 waves; workgroup = (head h, slice c), every byte is read once (nt).
"""
def gen(path, scramble=0):
    e = G("E")
    if scramble:
        e.I("s_cmp_ge_u32 s2, 256"); e.I("s_cbranch_scc1 L_F_exit")
        if scramble == 1: e.I("s_lshr_b32 s3, s2, 3\ns_and_b32 s2, s2, 7\ns_lshl_b32 s2, s2, 5\ns_or_b32 s2, s2, s3")
        elif scramble == 2: e.I("s_cmp_ge_u32 s2, 160\ns_cselect_b32 s3, 1, 0\ns_xor_b32 s2, s2, s3")
        elif scramble == 3: e.I("s_bfe_u32 s3, s2, 0x20003\ns_cmp_eq_u32 s3, 3\ns_cselect_b32 s3, 1, 0\ns_xor_b32 s2, s2, s3")
        elif scramble == 4: e.I("s_mul_i32 s2, s2, 37\ns_lshr_b32 s3, s2, 4\ns_and_b32 s3, s3, 7\ns_and_b32 s2, s2, 255\ns_xor_b32 s2, s2, s3")
    ptr(e, X_, 0); ptr(e, A_, 24)
    e.I("s_load_dwordx4 s[16:19], s[0:1], 48")
    ptr(e, K_, 8); ptr(e, WS_, 96)
    e.I("s_cmp_ge_u32 s2, 160\ns_cbranch_scc1 L_F")
    L = fix_hazards(e.L + program("A")) + fix_hazards(program("F"))
    txt = HDR + f"; @launch grid=(256,1,1) block=(512,1,1) lds={LDS_BYTES}\n" + DOC
    txt += '.amdgcn_target "amdgcn-amd-amdhsa--gfx950"\n.text\n' + f".globl {KN}_kernel\n.p2align 8\n.type {KN}_kernel,@function\n{KN}_kernel:\n"
    txt += "\n".join(L) + "\n"
    txt += f""".section .rodata,"a"
.p2align 6
.amdhsa_kernel {KN}_kernel
  .amdhsa_next_free_vgpr 256
  .amdhsa_next_free_sgpr 96
  .amdhsa_accum_offset 256
  .amdhsa_group_segment_fixed_size 0
  .amdhsa_kernarg_size 104
  .amdhsa_user_sgpr_count 2
  .amdhsa_user_sgpr_kernarg_segment_ptr 1
  .amdhsa_system_sgpr_workgroup_id_x 1
.end_amdhsa_kernel
"""
    open(path, "w").write(txt)
if __name__ == "__main__":
    gen("final.s")
    for k in (1, 2, 3, 4): gen(f"final_sc{k}.s", scramble=k)
```

```python
import sys, math, struct
from asmlib import Prog, fix_hazards
KN = "gated_mix__sliding_block_cached__glu_gated_swiglu__decode"
HDR = open("cdna_kernels/" + KN + ".s.ref").read().split("; Override launch")[0]
def f32(x): return "0x%08x" % struct.unpack("<I", struct.pack("<f", x))[0]
LOG2E = 1.4426950408889634
CS = LOG2E

QS, HS, ML, OS, FS = 0x1000, 0x50000, 0x70000, 0x80000, 0xC0000
WS_BYTES = 0x400000
OOB = 0x1000000
R0, R1, R2 = 0, 12544, 12544 + 8704
QL = R2 + 12800; MLL = QL + 384; GL = MLL + 64; SAV = GL + 64; LDS_BYTES = SAV + 1024
sH, sC, sW, sTAG = "s30", "s31", "s32", "s33"
K_, V_, A_, W_, X_, WS_, O_, G_ = "s[36:39]", "s[40:43]", "s[44:47]", "s[48:51]", "s[52:55]", "s[56:59]", "s[60:63]", "s[64:67]"
sPUB1, sQP, sMLP, sMLQ, sOP, sP2, sFP, sRED, sSPIN, sCS, sRHO, sL = ["s%d" % i for i in range(71, 83)]
sXCC, sLOC, sFL, sXM, sAM = "s8", "s3", "s17", "s[20:21]", "s[22:23]"
sG, sHI, sLO = "s9", "s6", "s7"
KSO = ["s70", "s24", "s25", "s26", "s27", "s28", "s29", "s16"]
vKV, vA, vX = "v1", "v2", "v3"
M = [4, 5, 6, 7]; AB = [8, 12]; D = [16, 20, 24]; Q = [28, 32, 36]; S = list(range(40, 48)); P = 48
vWR0, vRD0, vU16, vPOLL, vBP, vF = "v52", "v53", "v54", "v55", "v56", "v57"
T = list(range(58, 64))
KR = [64 + 4*i for i in range(24)]; VR = [160 + 4*i for i in range(24)]
AR = VR[18:24]; WR = KR[0:6]
vW, vWR1, vRD1, vML = "v88", "v89", "v90", "v91"
AB3 = [92, 96, 100]; PO = 104
XX, GG = 208, 216
vG, vL4, vL16 = "v224", "v225", "v226"
vACC, vOUT = "v148", "v149"; OWN, OLD = 150, 152
NADD = 56; SPINMAX = 0x800000; SHIFT = 51
def r4(b): return f"v[{b}:{b+3}]"
def r2(b): return f"v[{b}:{b+1}]"
DPPM = "row_mask:0xf bank_mask:0xf"
MF = "v_mfma_f32_16x16x32_bf16"

class G(Prog):
    def __init__(self, role):
        super().__init__(); self.role = role; self.cold = []; self.bigonly = True
    def C(self, s):
        for l in s.strip("\n").split("\n"): self.L.append("  ; " + l.strip())
    def exec_(self, m):
        if isinstance(m, str): self.I(f"s_mov_b64 exec, {m}")
        elif m == -1: self.I("s_mov_b64 exec, -1")
        elif m < 2**31: self.I(f"s_mov_b64 exec, {hex(m)}")
        elif m & 0xffffffff == 0xffffffff: self.I(f"s_mov_b32 exec_hi, {hex(m >> 32)}")
        else: self.I(f"s_mov_b32 exec_lo, {hex(m & 0xffffffff)}"); self.I(f"s_mov_b32 exec_hi, {hex(m >> 32)}")
    def red_low(self, regs, op="add"):
        for pat in ("quad_perm:[1,0,3,2]", "quad_perm:[2,3,0,1]", "row_half_mirror"):
            for r in regs: self.I(f"v_{op}_f32_dpp v{r}, v{r}, v{r} {pat} {DPPM}")
    def red_up(self, regs, tmps, op="add", do32=True):
        if do32:
            for r, t in zip(regs, tmps): self.I(f"v_permlane32_swap_b32 v{r}, v{t}")
            for r, t in zip(regs, tmps): self.I(f"v_{op}_f32 v{r}, v{r}, v{t}")
        for r, t in zip(regs, tmps): self.I(f"v_permlane16_swap_b32 v{r}, v{t}")
        for r, t in zip(regs, tmps): self.I(f"v_{op}_f32 v{r}, v{r}, v{t}")
        for r in regs: self.I(f"v_{op}_f32_dpp v{r}, v{r}, v{r} row_ror:8 {DPPM}")
    def build_a(self, dst, src):
        for w in range(4): self.I(f"v_and_b32 v{dst+w}, v{src}, v{M[w]}")
    def poll_issue(self, name, soff, mask=-1, voff=vPOLL):
        if mask != -1:
            for t in range(3): self.I(f"v_mov_b32 v{P+t}, 0")
            self.exec_(mask)
        self.vmem(name, f"buffer_load_dwordx4 {r4(P)}, {voff}, {WS_}, {soff} offen sc1")
        if mask != -1: self.exec_(-1)
    def republish(self, lab):
        return ["  ; repeat this wave's first hand-off write-through (once) for readers behind another L2",
                f"  s_cmp_lg_u32 {sFL}, 0", f"  s_cbranch_scc1 {lab}_np", f"  s_mov_b32 {sFL}, 1",
                "  s_mov_b64 s[18:19], exec", "  s_mov_b64 exec, 0xff",
                f"  s_lshl_b32 s34, {sW}, 7", f"  v_add_u32 v{T[4]}, s34, {vU16}",
                f"  ds_read_b128 {r4(T[0])}, v{T[4]} offset:{SAV}", "  s_waitcnt lgkmcnt(0)",
                f"  buffer_store_dwordx4 {r4(T[0])}, {vU16}, {WS_}, {sPUB1} offen sc1",
                "  s_waitcnt vmcnt(0)", "  s_mov_b64 exec, s[18:19]", f"{lab}_np:"]
    def poll_check(self, name, soff, mask=-1, voff=vPOLL):
        lab = f"L_{self.role}_{name}"
        assert name not in self.vm
        if mask != -1: self.exec_(mask)
        self.I(f"{lab}_chk:")
        if name in ("qpoll", "hpoll"):
            self.I(f"v_subrev_u32 v{T[0]}, {sTAG}, v{P+3}")
            self.I(f"v_cmp_lt_u32 vcc, 15, v{T[0]}")
            self.I(f"s_cbranch_vccnz {lab}_retry")
            self.I(f"v_cmp_ne_u32 vcc, {sXCC}, v{T[0]}")
            if name == "qpoll": self.I(f"s_mov_b32 {sLOC}, 1")
            self.I(f"s_cbranch_vccnz {lab}_remote")
            self.I(f"{lab}_back:")
            self.cold += [f"{lab}_remote:"] + self.republish(lab + "_rm") + ([f"  s_mov_b32 {sLOC}, 0"] if name == "qpoll" else []) + [f"  s_branch {lab}_back"]
        else:
            self.I(f"v_cmp_ne_u32 vcc, {sTAG}, v{P+3}")
            self.I(f"s_cbranch_vccnz {lab}_retry")
        if mask != -1: self.exec_(-1)
        self.cold += [f"{lab}_retry:"] + self.republish(lab + "_rt") + [
              f"  buffer_load_dwordx4 {r4(P)}, {voff}, {WS_}, {soff} offen sc1",
              f"  s_add_u32 {sSPIN}, {sSPIN}, 1", f"  s_cmp_gt_u32 {sSPIN}, {SPINMAX}", f"  s_cbranch_scc1 L_{self.role}_exit",
              "  s_waitcnt vmcnt(0)", f"  s_branch {lab}_chk"]
    def lds_put(self, addr, accs):
        self.exec_(sXM)
        for l, d in accs: self.I(f"ds_write_b128 {addr}, {r4(d)} offset:{l*256}")
        self.exec_(-1)
    def loc_store(self, name, txt):
        lab = f"L_{self.role}_{name}"
        self.I(f"s_cbranch_scc0 {lab}_far")
        self.vmem(name, txt)
        self.I(f"{lab}_done:")
        self.cold += [f"{lab}_far:", f"  {txt} sc1", f"  s_branch {lab}_done"]
    def first_handoff(self, claim=False):
        self.exec_(0xff)
        self.vmem("pub1", f"buffer_store_dwordx4 {r4(P)}, {vU16}, {WS_}, {sPUB1} offen")
        if claim:
            self.C("same bytes into this wave's o slot (wrong tag for o): later polls of it hit in L2")
            self.vmem("claim", f"buffer_store_dwordx4 {r4(P)}, {vU16}, {WS_}, {sOP} offen")
        self.I(f"s_lshl_b32 s34, {sW}, 7"); self.I(f"v_add_u32 v{T[4]}, s34, {vU16}")
        self.I(f"ds_write_b128 v{T[4]}, {r4(P)} offset:{SAV}")
        self.exec_(-1)
    def red192(self, pre):
        for t in range(3): self.I(f"ds_read2_b32 {r2(T[0]+2*t)}, {vRD0} offset0:{t} offset1:{192+t}")
        self.I(pre)
        for t in range(3):
            self.I(f"s_waitcnt lgkmcnt({2-t})")
            self.I(f"v_add_f32 v{P+t}, v{T[0]+2*t}, v{T[0]+2*t+1}")
        self.red_up([P, P+1, P+2], T[0:3])
    def transpose_sum(self, n, src=P):
        for t in range(n): self.I(f"ds_bpermute_b32 v{T[t]}, {vBP}, v{src+t}")
        self.I("s_waitcnt lgkmcnt(0)")
        self.red_low(T[0:n])

def srd(g, name, nbytes):
    b = int(name[2:name.index(":")])
    g.I(f"s_mov_b32 s{b+2}, {nbytes}"); g.I(f"s_mov_b32 s{b+3}, 0x20000")
def ptr(g, name, off):
    b = int(name[2:name.index(":")])
    g.I(f"s_load_dwordx2 s[{b}:{b+1}], s[0:1], {off}")

def program(role, fast=False, opt=()):
    g = G(role); A = role == "A"
    val = lambda k, d: next((int(o[len(k):]) for o in opt if o.startswith(k) and o[len(k):].lstrip("-").isdigit()), d)
    AS = val("as", 8)
    g.I(f"L_{role}:")
    if not A: g.I("s_cmp_ge_u32 s2, 256"); g.I("s_cbranch_scc1 L_F_exit")
    g.C("h = 4*(wg&7) + ((wg>>3)&3), c = wg>>5, w = wave, a8 = lane>>3, u = lane&7")
    if A and fast:
        g.C("wq rows 128c + 16w + 2*a8 + t (t = 0,1), columns 192h .. 192h+191; first loads leave from the first 128 code bytes")
        g.I(f"""
        s_and_b32 s34, s2, 7
        s_bfe_u32 {sRHO}, s2, 0x20003
        s_lshl2_add_u32 {sH}, s34, {sRHO}
        s_lshr_b32 {sC}, s2, 5
        s_lshl_b32 s34, {sC}, 12
        s_add_u32 s34, s34, {sH}
        v_lshrrev_b32 v{T[2]}, 3, v0
        v_and_b32 {vU16}, 7, v0
        v_lshl_add_u32 {vA}, v{T[2]}, 6, s34
        v_lshlrev_b32 {vU16}, 4, {vU16}
        s_movk_i32 s34, 384
        v_mad_u32_u24 {vA}, {vA}, s34, {vU16}
        s_waitcnt lgkmcnt(0)
        """)
        for l in range(3): g.vmem(f"A{l}", f"global_load_dwordx4 {r4(AR[l])}, {vA}, s[44:45] offset:{l*128} nt")
        g.I(f"s_lshl_b32 s35, {sC}, 8\nv_lshl_add_u32 {vX}, v{T[2]}, 2, s35")
        g.vmem("x", f"global_load_dword v{P}, {vX}, s[52:53]")
        ptr(g, WS_, 96); ptr(g, K_, 8)
        g.I(f"v_lshrrev_b32 v{T[0]}, 6, v0\nv_bfe_u32 v{T[1]}, v0, 3, 3\nv_readfirstlane_b32 {sW}, v{T[0]}\ns_movk_i32 s9, 12288")
        srd(g, A_, 640*12288)
    if fast and not A: ptr(g, WS_, 96); ptr(g, K_, 8)
    if not (A and fast):
        g.I(f"""
        s_and_b32 s34, s2, 7
        s_bfe_u32 {sRHO}, s2, 0x20003
        v_lshrrev_b32 v{T[0]}, 6, v0
        s_lshl2_add_u32 {sH}, s34, {sRHO}
        s_lshr_b32 {sC}, s2, 5
        v_and_b32 {vU16}, 7, v0
        v_lshlrev_b32 {vU16}, 4, {vU16}
        v_readfirstlane_b32 {sW}, v{T[0]}
        v_bfe_u32 v{T[1]}, v0, 3, 3
        """)
        srd(g, X_, 1280)
    a_loads = []
    if A:
        if not fast:
            g.C("wq rows 128c + 16w + 2*a8 + t (t = 0,1), columns 192h .. 192h+191")
            srd(g, A_, 640*12288)
            g.I(f"""
            s_mul_i32 s34, {sC}, {128*12288}
            s_mul_i32 s35, {sH}, 384
            s_add_u32 s34, s34, s35
            v_lshrrev_b32 v{T[2]}, 3, v0
            v_mul_u32_u24 {vA}, 24576, v{T[2]}
            v_add3_u32 {vA}, {vA}, {vU16}, s34
            s_lshl_b32 s35, {sC}, 8
            v_lshl_add_u32 {vX}, v{T[2]}, 2, s35
            s_movk_i32 s9, 12288
            s_waitcnt lgkmcnt(0)
            """)
            g.vmem("x", f"buffer_load_dword v{P}, {vX}, {X_}, 0 offen")
        for j in range(6):
            t, l = divmod(j, 3)
            a_loads.append(f"buffer_load_dwordx4 {r4(AR[j])}, {vA}, {A_}, {'s9' if t else '0'} offen offset:{l*128} nt")
    else:
        g.C("""hidden units 64l .. 64l+63 with l = 3*(wg&7) + c - 5; rho = h&3 picks a quarter of the 640 rows
        waves 0-3 read w1, waves 4-7 read w3: rows 160rho + 40(w&3) + 4*a8 + t (t<4) and + 32 + a8""")
        srd(g, A_, 640*3072)
        g.I(f"""
        s_movk_i32 s68, 6144
        s_mul_i32 {sL}, s34, 3
        s_add_u32 {sL}, {sL}, {sC}
        s_sub_u32 {sL}, {sL}, 5
        s_and_b32 s34, {sW}, 3
        s_mul_i32 s34, s34, 40
        s_mul_i32 s35, {sRHO}, 160
        s_add_u32 s34, s34, s35
        s_lshl_b32 s35, s34, 1
        v_lshl_add_u32 {vX}, v{T[1]}, 3, s35
        v_lshl_add_u32 v{T[3]}, v{T[1]}, 1, s35
        s_mul_i32 s34, s34, 3072
        s_lshl_b32 s35, {sL}, 7
        s_add_u32 s34, s34, s35
        v_mul_u32_u24 v{T[2]}, 3072, v{T[1]}
        v_add_u32 v{T[4]}, s34, {vU16}
        v_lshl_add_u32 {vA}, v{T[2]}, 2, v{T[4]}
        v_add_u32 v{Q[0]+2}, v{T[2]}, v{T[4]}
        s_mov_b32 s9, {32*3072}
        s_cmp_ge_u32 {sW}, 4
        s_waitcnt lgkmcnt(0)
        s_cselect_b32 s44, s18, s16
        s_cselect_b32 s45, s19, s17
        """)
        g.vmem("x0", f"buffer_load_dwordx2 {r2(P)}, {vX}, {X_}, 0 offen")
        g.vmem("x", f"buffer_load_ushort v{P+2}, v{T[3]}, {X_}, 0 offen offset:64")
        for t in range(4):
            a_loads.append(f"buffer_load_dwordx4 {r4(AR[t])}, {vA}, {A_}, {'s68' if t//2 else '0'} offen offset:{(t%2)*3072} nt")
        a_loads.append(f"buffer_load_dwordx4 {r4(AR[4])}, v{Q[0]+2}, {A_}, s9 offen nt")
    nA = len(a_loads); nW = 6 if A else 3
    seq = [f"A{j}" for j in range(nA)] + [f"K{j}" for j in range(24)] + [f"V{j}" for j in range(24)] + [f"W{j}" for j in range(nW)]
    pos = [0]; issued = set()
    def issue():
        nm = seq[pos[0]]; pos[0] += 1; issued.add(nm); j = int(nm[1:])
        if nm[0] == "A": g.vmem(nm, a_loads[j])
        elif nm[0] == "W":
            if A: g.vmem(nm, f"buffer_load_dwordx4 {r4(WR[j])}, {vW}, {W_}, 0 offen offset:{(j//2)*1280 + (j%2)*128} nt")
            else: g.vmem(nm, f"buffer_load_dwordx4 {r4(WR[j])}, {('v%d' % AB3[1]) if j == 2 else vW}, {W_}, 0 offen offset:{j*128} nt")
        else:
            reg, sr = (KR[j], K_) if nm[0] == "K" else (VR[j], V_)
            g.vmem(nm, f"buffer_load_dwordx4 {r4(reg)}, {vKV}, {sr}, {KSO[j//3]} offen offset:{(j%3)*128} nt")
    if A and fast: pos[0] = 3; issued.update(("A0", "A1", "A2"))
    else:
        for _ in range(3): issue()
    g.C("remaining set-up runs under the first loads; ws[0] only seeds this launch's hand-off tag")
    if not (A and fast): g.I(f"s_load_dword {sTAG}, s[56:57], 0")
    ptr(g, V_, 16); ptr(g, W_, 32 if A else 64); ptr(g, O_, 80)
    if not A: ptr(g, G_, 72)
    g.I(f"""
    s_mul_i32 s34, {sH}, 12582912
    s_add_u32 s34, s34, {28672*384}
    v_mul_u32_u24 {vKV}, 384, v{T[1]}
    v_add3_u32 {vKV}, {vKV}, {vU16}, s34
    """)
    srd(g, K_, 402653184); srd(g, V_, 402653184); srd(g, WS_, WS_BYTES); srd(g, W_, 6144*1280 if A else 1536*1280); srd(g, O_, 1280)
    if not A: srd(g, G_, 1280)
    g.I(f"""
    s_mov_b32 {sSPIN}, 0
    s_mov_b32 {sFL}, 0
    s_getreg_b32 {sXCC}, hwreg(HW_REG_XCC_ID, 0, 4)
    s_mov_b32 {sCS}, {f32(CS)}
    s_mov_b32 s20, 0x00ff00ff
    s_mov_b32 s21, 0xff00ff00
    """)
    g.C("lane masks that place one bf16 coefficient at element u of an MFMA A fragment")
    g.I(f"""
    v_and_b32 v{T[0]}, 1, v0
    v_lshlrev_b32 v{T[0]}, 4, v{T[0]}
    v_mov_b32 v{T[2]}, 0xffff
    v_lshlrev_b32 v{T[2]}, v{T[0]}, v{T[2]}
    v_bfe_u32 v{T[0]}, v0, 1, 2
    """)
    for w in range(4): g.I(f"v_cmp_eq_u32 s[{22+2*w}:{23+2*w}], {w}, v{T[0]}")
    for w in range(4): g.I(f"v_cndmask_b32 v{M[w]}, 0, v{T[2]}, s[{22+2*w}:{23+2*w}]")
    g.C("LDS and hand-off slot addresses")
    g.I(f"""
    v_lshl_add_u32 {vPOLL}, v{T[1]}, 10, {vU16}
    v_lshlrev_b32 {vBP}, 1, {vU16}
    v_lshl_add_u32 {vBP}, v{T[1]}, 2, {vBP}
    v_bfe_u32 v{T[0]}, v0, 4, 1
    v_lshlrev_b32 v{T[0]}, 4, v{T[0]}
    v_lshl_add_u32 v{T[0]}, {vU16}, 1, v{T[0]}
    v_bfe_u32 v{T[2]}, v0, 5, 1
    s_mul_i32 s34, {sW}, {392*4}
    v_mul_u32_u24 {vWR0}, 768, v{T[2]}
    v_add3_u32 {vWR0}, {vWR0}, v{T[0]}, s34
    s_mul_i32 s34, {sW}, 96
    v_mul_u32_u24 {vRD0}, {392*4}, v{T[1]}
    v_and_b32 v{T[3]}, 7, v0
    v_mul_u32_u24 v{T[3]}, 12, v{T[3]}
    v_add3_u32 {vRD0}, {vRD0}, v{T[3]}, s34
    s_lshl_b32 s34, {sW}, 7
    s_lshl_b32 s35, {sH}, 13
    s_add_u32 s35, s35, s34
    s_add_u32 {sQP}, s35, {QS}
    s_add_u32 {sP2}, s35, {QS if 'alias' in opt else OS}
    s_lshl_b32 s35, {sC}, 10
    s_add_u32 {sPUB1}, {sQP}, s35
    s_add_u32 {sOP}, {sP2}, s35
    s_lshl_b32 s35, {sH}, 10
    s_add_u32 {sMLQ}, s35, {ML}
    s_lshl_b32 s35, {sC}, 7
    s_add_u32 {sMLP}, {sMLQ}, s35
    """)
    if not A:
        g.I(f"""
        s_lshl_b32 s35, {sL}, 12
        s_add_u32 s35, s35, s34
        s_add_u32 {sP2}, s35, {HS}
        s_lshl_b32 s35, {sRHO}, 10
        s_add_u32 {sPUB1}, {sP2}, s35
        s_mul_i32 s34, {sW}, {136*4}
        s_add_u32 s34, s34, {R1}
        v_lshlrev_b32 v{Q[0]}, 8, v{T[2]}
        v_add3_u32 v{Q[0]}, v{Q[0]}, v{T[0]}, s34
        s_lshl_b32 s34, {sW}, 5
        s_add_u32 s34, s34, {R1}
        v_mul_u32_u24 v{Q[0]+1}, {136*4}, v{T[1]}
        v_lshrrev_b32 v{T[3]}, 2, {vU16}
        v_add3_u32 v{Q[0]+1}, v{Q[0]+1}, v{T[3]}, s34
        s_cmp_eq_u32 {sW}, 0
        s_cselect_b32 s34, 0, {OOB}
        v_and_b32 {vL16}, 63, v0
        v_lshl_add_u32 {vL4}, {vL16}, 2, s34
        v_lshl_add_u32 {vL16}, {vL16}, 4, s34
        """)
    g.C(f"step t of this wave covers the 8 keys of block (64t + 8w + c + {SHIFT}h) mod 512 of the head's window")
    g.I(f"s_lshl3_add_u32 s35, {sW}, {sC}"); g.I(f"s_mul_i32 s34, {sH}, {SHIFT}"); g.I("s_add_u32 s35, s35, s34")
    for t in range(8):
        if t: g.I("s_add_u32 s35, s35, 64")
        g.I("s_and_b32 s34, s35, 511"); g.I(f"s_mul_i32 {KSO[t]}, s34, 3072")
    for t in range(8): g.I(f"v_mov_b32 v{S[t]}, 0")
    g.I("s_mov_b32 s14, 0x01000100"); g.I("s_mov_b32 s15, 0x03020302")
    if A and fast:
        g.I("s_waitcnt lgkmcnt(0)"); g.I(f"s_load_dword {sTAG}, s[56:57], 0")
        g.cap(0)
        for _ in range(3): issue()
    g.wait("x")
    st = dict(aj=0, pub1=False, q=False, qi=False, kt=0, sm=False, vj=0, mli=not A, ml=not A, hi=False, h=A, addr=False, gi=False, g=A)
    landed = lambda x: x in issued and x not in g.vm
    gone = lambda x: x not in g.vm
    g.C("x @ W on this slice: masked-diagonal A fragment (x[row] at element u) times the raw rows as B")
    for t in range(2):
        g.I(f"v_perm_b32 v{T[0]}, v{P}, v{P}, s{14+t}"); g.build_a(AB[t], T[0])
    def a_mfma(j):
        if A:
            t, l = divmod(j, 3)
            g.I(f"{MF} {r4(D[l])}, {r4(AB[t])}, {r4(AR[j])}, {r4(D[l]) if t else 0}")
        else:
            g.I(f"{MF} {r4(D[0])}, {r4(AB[j%2])}, {r4(AR[j])}, {r4(D[0]) if j else 0}")
            if j + 2 < 5:
                t = j + 2
                g.I(f"v_perm_b32 v{T[0]}, v{P+t//2}, v{P+t//2}, s{14+t%2}"); g.build_a(AB[t%2], T[0])
    def pub1():
        g.C("cross-wave sum in LDS, then publish {values, tag + XCC id} granules (plain store: stays in this L2;\na reader behind another L2 makes the wave repeat it write-through, see the *_remote / *_retry blocks)")
        g.lds_put(vWR0 if A else f"v{Q[0]}", list(enumerate(D)) if A else [(0, D[0])])
        g.I("s_waitcnt lgkmcnt(0)"); g.I(f"s_add_u32 {sTAG}, {sTAG}, 0x9e3779b9"); g.I("s_barrier")
        tagx = f"s_add_u32 s34, {sTAG}, {sXCC}\nv_mov_b32 v{P+3}, s34"
        if A: g.red192(tagx)
        else:
            g.I(f"ds_read2_b32 {r2(T[0])}, v{Q[0]+1} offset0:0 offset1:64")
            g.I(tagx); g.I(f"v_mov_b32 v{P+2}, 0")
            g.I("s_waitcnt lgkmcnt(0)")
            g.I(f"v_add_f32 v{P}, v{T[0]}, v{T[1]}")
            g.red_up([P], [T[0]], do32=False)
            g.I(f"v_permlane32_swap_b32 v{P}, v{P+1}")
        g.first_handoff(claim=not A and "claim" in opt)
        g.I(f"s_lshr_b32 {sHI}, {sTAG}, 26\ns_or_b32 {sHI}, {sHI}, 0x43300000\ns_lshl_b32 {sLO}, {sTAG}, 6")
        if not A:
            g.C("40 waves reset the output accumulator cells {f64 sum = 0, f64 2^52 + 64*tag} (others are out of range)")
            g.I(f"""
            s_lshl_b32 s34, {sL}, 1
            s_add_u32 s34, s34, {sRHO}
            s_sub_u32 s34, s34, 2
            s_cmp_ge_u32 {sRHO}, 2
            s_cselect_b32 s34, s34, 64
            s_cmp_eq_u32 {sW}, 1
            s_cselect_b32 s34, s34, 64
            s_cmp_lt_u32 s34, 40
            s_cselect_b32 s34, s34, {OOB >> (AS+2)}
            s_lshl_b32 s34, s34, {AS+2}
            v_bfe_u32 v{T[4]}, v0, 2, 2
            v_and_b32 v{T[5]}, 3, v0
            v_lshlrev_b32 v{T[5]}, 4, v{T[5]}
            v_lshl_add_u32 v{T[4]}, v{T[4]}, {AS}, v{T[5]}
            v_add_u32 v{T[4]}, s34, v{T[4]}
            v_mov_b32 v{T[0]}, 0
            v_mov_b32 v{T[1]}, 0
            v_mov_b32 v{T[2]}, {sLO}
            v_mov_b32 v{T[3]}, {sHI}
            s_mov_b32 s34, {FS}
            """)
            g.exec_(0xffff)
            g.vmem("init", f"buffer_store_dwordx4 {r4(T[0])}, v{T[4]}, {WS_}, s34 offen sc1")
            g.exec_(-1)
    def consume_q():
        g.C("q = sum of the five partials, rounded to bf16, shared through LDS")
        g.poll_check("qpoll", sQP, mask=0xffffffffff)
        g.transpose_sum(3)
        g.I(f"""
        v_cvt_pk_bf16_f32 v{T[0]}, v{T[0]}, v{T[1]}
        v_cvt_pk_bf16_f32 v{T[1]}, v{T[2]}, v{T[2]}
        v_lshrrev_b32 v{T[2]}, 3, v0
        v_mul_u32_u24 v{T[2]}, 6, v{T[2]}
        """)
        g.exec_(0x0101010101010101)
        g.I(f"""
        ds_write_b16 v{T[2]}, v{T[0]} offset:{QL}
        ds_write_b16_d16_hi v{T[2]}, v{T[0]} offset:{QL+2}
        ds_write_b16 v{T[2]}, v{T[1]} offset:{QL+4}
        """)
        g.exec_(-1)
        g.I("s_waitcnt lgkmcnt(0)"); g.I("s_barrier")
        for l in range(3): g.I(f"ds_read_b128 {r4(Q[l])}, {vU16} offset:{QL + l*128}")
        g.I("s_waitcnt lgkmcnt(0)")
    def k_octets(ts):
        g.C(f"scores of key blocks {ts}: bf16(bf16(q.k) / sqrt(192))")
        for l in range(3):
            for e in range(4):
                for t in ts: g.I(f"v_dot2c_f32_bf16 v{S[t]}, v{KR[3*t+l]+e}, v{Q[l]+e}")
        g.red_low([S[t] for t in ts])
        a, b = S[ts[0]], S[ts[-1]]
        for k in range(2):
            g.I(f"v_cvt_pk_bf16_f32 v{a}, v{a}, v{b}")
            if b != a: g.I(f"v_and_b32 v{b}, 0xffff0000, v{a}")
            g.I(f"v_lshlrev_b32 v{a}, 16, v{a}")
            if k == 0:
                for r in sorted({a, b}): g.I(f"v_mul_f32 v{r}, {f32(192.0 ** -0.5)}, v{r}")
    def softmax():
        g.C("p = exp2(log2(e)*(s - m_wave)), then rescaled to the workgroup maximum; {max, sum} of the workgroup is published")
        g.I(f"""
        v_max3_f32 v{T[0]}, v{S[0]}, v{S[1]}, v{S[2]}
        v_max3_f32 v{T[1]}, v{S[3]}, v{S[4]}, v{S[5]}
        v_max3_f32 v{T[0]}, v{T[0]}, v{S[6]}, v{S[7]}
        v_max_f32 v{T[0]}, v{T[0]}, v{T[1]}
        """)
        g.red_up([T[0]], [T[1]], op="max")
        g.I(f"""
        v_mul_f32 v{P}, {sCS}, v{T[0]}
        s_lshl_b32 s35, {sW}, 3
        v_readfirstlane_b32 s34, v{P}
        v_mov_b32 v{T[4]}, s35
        v_lshrrev_b32 v{T[5]}, 1, {vU16}
        v_mov_b32 {vF}, s34
        """)
        for t in range(8): g.I(f"v_fma_f32 v{S[t]}, v{S[t]}, {sCS}, -{vF}")
        for t in range(8): g.I(f"v_exp_f32 v{S[t]}, v{S[t]}")
        g.I(f"""
        v_add_f32 v{T[0]}, v{S[0]}, v{S[1]}
        v_add_f32 v{T[1]}, v{S[2]}, v{S[3]}
        v_add_f32 v{T[2]}, v{S[4]}, v{S[5]}
        v_add_f32 v{T[3]}, v{S[6]}, v{S[7]}
        v_add_f32 v{T[0]}, v{T[0]}, v{T[1]}
        v_add_f32 v{T[2]}, v{T[2]}, v{T[3]}
        v_add_f32 v{P+1}, v{T[0]}, v{T[2]}
        """)
        g.red_up([P+1], [T[1]])
        g.exec_(1)
        g.I(f"ds_write_b64 v{T[4]}, {r2(P)} offset:{MLL}")
        g.exec_(-1)
        g.I("s_waitcnt lgkmcnt(0)"); g.I("s_barrier")
        g.I(f"ds_read_b64 {r2(T[0])}, v{T[5]} offset:{MLL}")
        if not A: g.I(f"v_mov_b32 v{T[2]}, 0"); g.I(f"ds_read_b32 v{P+2}, v{T[2]} offset:{GL}")
        g.I(f"v_mov_b32 v{P+3}, {sTAG}")
        g.I(f"s_cmp_eq_u32 {sW}, 0"); g.I(f"s_cselect_b32 s34, 0, {OOB}"); g.I(f"v_add_u32 v{T[4]}, s34, {vU16}")
        g.I("s_waitcnt lgkmcnt(0)")
        g.I(f"v_mov_b32 v{P}, v{T[0]}")
        g.red_low([P], op="max")
        g.I(f"""
        v_sub_f32 v{T[0]}, v{T[0]}, v{P}
        v_sub_f32 {vF}, {vF}, v{P}
        v_exp_f32 v{T[0]}, v{T[0]}
        v_exp_f32 {vF}, {vF}
        v_mul_f32 v{P+1}, v{T[0]}, v{T[1]}
        """)
        for k, pat in enumerate(("quad_perm:[1,0,3,2]", "quad_perm:[2,3,0,1]", "row_half_mirror", None)):
            for t in (2*k, 2*k+1): g.I(f"v_mul_f32 v{S[t]}, v{S[t]}, {vF}")
            if pat: g.I(f"v_add_f32_dpp v{P+1}, v{P+1}, v{P+1} {pat} {DPPM}")
        g.exec_(0xff if "mlfull" in opt else 1)
        g.I(f"s_cmp_lg_u32 {sLOC}, 0")
        g.loc_store("pubml", f"buffer_store_dwordx4 {r4(P)}, v{T[4]}, {WS_}, {sMLP} offen")
        g.exec_(-1)
        for t in range(8): g.I(f"v_cvt_pk_bf16_f32 v{S[t]}, v{S[t]}, v{S[t]}")
        if not A: g.I(f"v_sub_f32 {vF}, 1.0, v{P+2}"); g.I(f"v_cvt_pk_bf16_f32 {vF}, {vF}, {vF}"); g.I(f"v_lshlrev_b32 {vF}, 16, {vF}")
        g.build_a(AB[0], S[0])
        g.C("o += p @ V, same masked-diagonal MFMA form")
    def tail_addr():
        NC, SP, RB = (128, 528, R1) if A else (192, 784, R2)
        g.C("addresses of the output projection stage")
        g.I(f"""
        v_bfe_u32 v{T[1]}, v0, 3, 3
        v_bfe_u32 v{T[0]}, v0, 4, 1
        v_lshlrev_b32 v{T[0]}, 4, v{T[0]}
        v_lshl_add_u32 v{T[0]}, {vU16}, 1, v{T[0]}
        v_bfe_u32 v{T[2]}, v0, 5, 1
        s_lshr_b32 s34, {sW}, 1
        s_mul_i32 s34, s34, {SP*4}
        s_and_b32 s35, {sW}, 1
        s_mul_i32 s35, s35, {NC*8}
        s_add_u32 s34, s34, s35
        s_add_u32 s34, s34, {RB}
        v_mul_u32_u24 {vWR1}, {NC*4}, v{T[2]}
        v_add3_u32 {vWR1}, {vWR1}, v{T[0]}, s34
        v_and_b32 v{T[3]}, 1, v0
        v_lshl_add_u32 v{T[3]}, v{T[2]}, 1, v{T[3]}
        v_mul_u32_u24 {vRD1}, {SP*4}, v{T[3]}
        v_and_b32 v{T[3]}, 30, v0
        s_lshl_b32 s34, {sW}, 6
        s_add_u32 s34, s34, {RB}
        v_lshl_add_u32 {vRD1}, v{T[3]}, 1, {vRD1}
        v_add_u32 {vRD1}, s34, {vRD1}
        v_lshl_add_u32 {vOUT}, v{T[2]}, 8, v{T[3]}
        v_lshrrev_b32 v{T[3]}, 1, {vU16}
        v_lshl_add_u32 {vACC}, v{T[1]}, {AS}, v{T[3]}
        v_mul_u32_u24 v{T[3]}, {7*(4 << AS)}, v{T[2]}
        v_add_u32 {vACC}, {vACC}, v{T[3]}
        v_mov_b32 v{OLD}, 0
        v_mov_b32 v{OLD+1}, 0x3ff00000
        """)
        if A:
            g.C("wo rows 192h + 24w + 3*a8 + t (t<3), columns 128c .. 128c+127")
            g.I(f"""
            v_lshlrev_b32 {vML}, 7, v{T[1]}
            s_mul_i32 s34, {sH}, 192
            s_mul_i32 s35, {sW}, 24
            s_add_u32 s34, s34, s35
            s_mul_i32 s34, s34, 1280
            s_lshl_b32 s35, {sC}, 8
            s_add_u32 s34, s34, s35
            v_mul_u32_u24 {vW}, 3840, v{T[1]}
            v_add3_u32 {vW}, {vW}, {vU16}, s34
            s_lshl3_add_u32 {sRED}, {sC}, {sW}
            s_mov_b32 s22, -1
            s_mov_b32 s23, 0
            """)
        else:
            g.C("w2 rows 64l + 8w + a8, columns from 0 / 192 / 384 / 512 (192,192,128,128 wide) by rho")
            g.I(f"""
            s_mul_i32 {sRED}, {sRHO}, 12
            s_min_u32 {sRED}, {sRED}, 32
            s_lshl_b32 s34, {sL}, 6
            s_lshl_b32 s35, {sW}, 3
            s_add_u32 s34, s34, s35
            s_mul_i32 s34, s34, 1280
            s_lshl_b32 s35, {sRED}, 5
            s_add_u32 s34, s34, s35
            v_mul_u32_u24 {vW}, 1280, v{T[1]}
            v_add3_u32 {vW}, {vW}, {vU16}, s34
            s_cmp_ge_u32 {sRHO}, 2
            s_cselect_b32 s34, {OOB}, 0
            s_cselect_b32 s23, 0, -1
            v_add_u32 v{AB3[1]}, s34, {vW}
            s_cmp_ge_u32 {sW}, 4
            s_cselect_b32 s23, 0, s23
            s_mov_b32 s22, -1
            s_add_u32 {sRED}, {sRED}, {sW}
            """)
        g.I(f"s_lshl_b32 {sFP}, {sRED}, {AS+2}\ns_add_u32 {sFP}, {sFP}, {FS}\ns_lshl_b32 {sRED}, {sRED}, 5\ns_add_u32 s5, {sTAG}, 16")
    def consume_ml():
        g.C("softmax weight of each of the 8 partial o's: exp2(m_c - M) / L; the gate g rides in an F granule")
        g.poll_check("mlpoll", sMLQ, voff=vML)
        g.I(f"v_mov_b32 v{T[0]}, v{P}")
        g.I(f"v_readlane_b32 {sG}, v{P+2}, 40")
        g.red_up([T[0]], [T[1]], op="max")
        g.I(f"""
        v_readfirstlane_b32 s34, v{T[0]}
        v_subrev_f32 {vF}, s34, v{P}
        v_exp_f32 {vF}, {vF}
        v_mul_f32 v{T[0]}, {vF}, v{P+1}
        """)
        g.red_up([T[0]], [T[1]])
        g.I(f"v_rcp_f32 v{T[0]}, v{T[0]}\nv_readfirstlane_b32 s34, v{T[0]}\nv_mul_f32 {vF}, s34, {vF}")
        if "tpoll" in opt: g.I(f"ds_bpermute_b32 {vF}, {vBP}, {vF}\nds_bpermute_b32 v154, {vBP}, {vPOLL}\ns_waitcnt lgkmcnt(0)")
    def consume_h():
        g.C("h = silu(gate) * up from the four row-quarter partials")
        g.poll_check("hpoll", sP2, mask=0xffffffff)
        g.transpose_sum(2)
        g.I(f"""
        v_cvt_pk_bf16_f32 v{T[0]}, v{T[0]}, v{T[1]}
        v_and_b32 v{T[1]}, 0xffff0000, v{T[0]}
        v_lshlrev_b32 v{T[0]}, 16, v{T[0]}
        v_mul_f32 v{T[2]}, {f32(-LOG2E)}, v{T[0]}
        v_exp_f32 v{T[2]}, v{T[2]}
        v_add_f32 v{T[2]}, 1.0, v{T[2]}
        v_rcp_f32 v{T[2]}, v{T[2]}
        v_mul_f32 v{T[0]}, v{T[0]}, v{T[2]}
        v_cvt_pk_bf16_f32 v{T[0]}, v{T[0]}, v{T[0]}
        v_lshlrev_b32 v{T[0]}, 16, v{T[0]}
        v_mul_f32 v{T[0]}, v{T[0]}, v{T[1]}
        v_cvt_pk_bf16_f32 v{T[0]}, v{T[0]}, v{T[0]}
        """)
        g.build_a(AB3[0], T[0])
    def g_issue():
        g.C("gate operands (in range for wave 0 only)")
        g.vmem("gx4", f"buffer_load_dwordx4 {r4(XX)}, {vL16}, {X_}, 0 offen")
        g.vmem("gx1", f"buffer_load_dword v{XX+4}, {vL4}, {X_}, 0 offen offset:1024")
        g.vmem("gg4", f"buffer_load_dwordx4 {r4(GG)}, {vL16}, {G_}, 0 offen")
        g.vmem("gg1", f"buffer_load_dword v{GG+4}, {vL4}, {G_}, 0 offen offset:1024")
    def g_compute():
        g.C("g = sigmoid(sum(x * gate_w)) -> LDS")
        g.I(f"s_cmp_lg_u32 {sW}, 0"); g.I("s_cbranch_scc1 L_F_nog")
        g.I(f"v_mov_b32 {vG}, 0")
        for k in range(5):
            g.I(f"""
            v_lshlrev_b32 v{T[1]}, 16, v{XX+k}
            v_lshlrev_b32 v{T[2]}, 16, v{GG+k}
            v_and_b32 v{XX+k}, 0xffff0000, v{XX+k}
            v_and_b32 v{GG+k}, 0xffff0000, v{GG+k}
            v_mul_f32 v{T[1]}, v{T[1]}, v{T[2]}
            v_mul_f32 v{T[2]}, v{XX+k}, v{GG+k}
            v_cvt_pk_bf16_f32 v{T[1]}, v{T[1]}, v{T[2]}
            v_lshlrev_b32 v{T[2]}, 16, v{T[1]}
            v_and_b32 v{T[1]}, 0xffff0000, v{T[1]}
            v_add_f32 {vG}, {vG}, v{T[2]}
            v_add_f32 {vG}, {vG}, v{T[1]}
            """)
        gi = int(vG[1:])
        g.red_low([gi]); g.red_up([gi], [T[1]])
        g.I(f"""
        v_cvt_pk_bf16_f32 {vG}, {vG}, {vG}
        v_lshlrev_b32 {vG}, 16, {vG}
        v_mul_f32 {vG}, {f32(-LOG2E)}, {vG}
        v_exp_f32 {vG}, {vG}
        v_add_f32 {vG}, 1.0, {vG}
        v_rcp_f32 {vG}, {vG}
        v_cvt_pk_bf16_f32 {vG}, {vG}, {vG}
        v_lshlrev_b32 {vG}, 16, {vG}
        s_mov_b64 exec, 1
        ds_write_b32 {vL4}, {vG} offset:{GL}
        s_mov_b64 exec, -1
        L_F_nog:
        """)
    def v_mfma(j):
        t, l = divmod(j, 3)
        g.I(f"{MF} {r4(D[l])}, {r4(AB[t%2])}, {r4(VR[j])}, {r4(D[l]) if t else 0}")
        if l == 0 and t < 7: g.build_a(AB[(t+1)%2], S[t+1])
    def work():
        while st["aj"] < nA and landed(f"A{st['aj']}"):
            a_mfma(st["aj"]); st["aj"] += 1
        if st["aj"] == nA and not st["pub1"]: pub1(); st["pub1"] = True
        if not st["g"] and not st["gi"] and f"K{val('gp', 7)}" in issued: g_issue(); st["gi"] = True
        elif st["gi"] and not st["g"] and gone("gg1"): g_compute(); st["g"] = True
        if not st["qi"] and f"K{val('qp', 17)}" in issued:
            assert st["g"]
            g.poll_issue("qpoll", sQP, mask=0xffffffffff); st["qi"] = True
        elif st["qi"] and not st["q"] and gone("qpoll"): consume_q(); st["q"] = True
        elif st["q"] and st["kt"] < 8:
            ts = [t for t in range(st["kt"], min(st["kt"]+2, 8)) if landed(f"K{3*t+2}")]
            if ts: k_octets(ts); st["kt"] = ts[-1] + 1
        if st["kt"] == 8 and not st["sm"]: softmax(); st["sm"] = True
        elif st["sm"] and not st["addr"]: tail_addr(); st["addr"] = True
        elif st["addr"] and not st["h"] and not st["hi"]: g.poll_issue("hpoll", sP2, mask=0xffffffff); st["hi"] = True
        elif st["hi"] and not st["h"] and gone("hpoll"): consume_h(); st["h"] = True
        if st["addr"] and not st["mli"] and f"V{val('mlp', 14)}" in issued: g.poll_issue("mlpoll", sMLQ, voff=vML); st["mli"] = True
        elif st["mli"] and not st["ml"] and gone("mlpoll"): consume_ml(); st["ml"] = True
        if st["sm"]:
            while st["vj"] < 24 and landed(f"V{st['vj']}"): v_mfma(st["vj"]); st["vj"] += 1
    if A and fast: work()
    while st["vj"] < 24:
        g.cap(0); issue()
        while pos[0] < len(seq) and int(seq[pos[0]][1:]) % 3: issue()
        work(); work()
    assert st["ml"] and st["h"] and st["g"]
    g.C("publish this workgroup's partial o with tag + 16 (L2-resident when every reader shares this L2, else write-through);\nan A slot reuses its q slot: all 8 workgroups of the head consumed q before they published {max, sum}")
    for _ in range(val("wpre", 0)):
        if pos[0] < len(seq): issue()
    g.lds_put(vWR0, list(enumerate(D)))
    for _ in range(val("wmid", 0)):
        if pos[0] < len(seq): issue()
    g.I("s_waitcnt lgkmcnt(0)"); g.I("s_barrier")
    for _ in range(val("wbar", 0)):
        if pos[0] < len(seq): issue()
    g.red192(f"v_mov_b32 v{P+3}, s5\ns_cmp_lg_u32 {sLOC}, 0")
    g.exec_(0xff)
    g.loc_store("pubo", f"buffer_store_dwordx4 {r4(P)}, {vU16}, {WS_}, {sOP} offen")
    g.exec_(-1)
    early = A and "early" in opt
    if early: g.vmem("op0", f"buffer_load_dwordx4 {r4(PO)}, {vPOLL}, {WS_}, {sP2} offen sc1")
    while pos[0] < len(seq): issue()
    X, Y = AB3[0], AB3[1]
    if A:
        g.C("gather the 8 partial o's of rows 24w .. 24w+23, weight, sum, multiply with wo")
        tp = "tpoll" in opt
        if early:
            g.wait("op0"); keep = list(g.vm)
            g.I(f"v_cmp_ne_u32 vcc, s5, v{PO+3}")
            for t in range(3): g.I(f"v_mul_f32 v{PO+t}, v{PO+t}, {vF}")
            g.I("s_cbranch_vccz L_A_ook")
        if val("opw", 3) >= 0: g.wait(f"W{val('opw', 3)}")
        g.I("L_A_opoll:")
        g.I(f"buffer_load_dwordx4 {r4(PO)}, {'v154' if tp else vPOLL}, {WS_}, {sP2} offen sc1")
        g.I(f"s_add_u32 {sSPIN}, {sSPIN}, 1\ns_cmp_gt_u32 {sSPIN}, {SPINMAX}\ns_cbranch_scc1 L_A_exit")
        g.I("s_waitcnt vmcnt(0)"); g.vm = []
        g.I(f"v_cmp_ne_u32 vcc, s5, v{PO+3}")
        for t in range(3): g.I(f"v_mul_f32 v{T[t] if tp else PO+t}, v{PO+t}, {vF}")
        g.I("s_cbranch_vccnz L_A_opoll")
        if early: g.I("L_A_ook:"); g.vm = keep
        if tp: g.red_low(T[0:3])
        else: g.transpose_sum(3, src=PO)
        for t in range(3): g.I(f"v_cvt_pk_bf16_f32 v{T[t]}, v{T[t]}, v{T[t]}")
        g.build_a(AB3[0], T[0]); g.build_a(AB3[1], T[1])
        for l in range(2): g.I(f"{MF} {r4(D[l])}, {r4(AB3[0])}, {r4(WR[l])}, 0")
        g.build_a(AB3[2], T[2])
        for t in range(1, 3):
            for l in range(2):
                g.wait(f"W{2*t+l}")
                g.I(f"{MF} {r4(D[l])}, {r4(AB3[t])}, {r4(WR[2*t+l])}, {r4(D[l])}")
        g.lds_put(vWR1, [(0, D[0]), (1, D[1])])
        g.I("s_waitcnt lgkmcnt(0)"); g.I("s_barrier")
        g.I(f"""
        ds_read2st64_b32 {r2(X)}, {vRD1} offset0:0 offset1:2
        ds_read2st64_b32 {r2(X+2)}, {vRD1} offset0:4 offset1:6
        s_waitcnt lgkmcnt(1)
        v_add_f32 v{X}, v{X}, v{X+1}
        s_waitcnt lgkmcnt(0)
        v_add_f32 v{X+2}, v{X+2}, v{X+3}
        v_add_f32 v{X}, v{X}, v{X+2}
        v_permlane32_swap_b32 v{X}, v{X+1}
        v_add_f32 v{X}, v{X}, v{X+1}
        v_add_f32_dpp v{X}, v{X}, v{X} quad_perm:[1,0,3,2] {DPPM}
        s_mov_b64 exec, 0x55555555
        v_mul_f32 v{X}, {sG}, v{X}
        """)
    else:
        g.C("h @ w2 on this slice")
        for l in range(3):
            g.wait(f"W{l}")
            g.I(f"{MF} {r4(D[l])}, {r4(AB3[0])}, {r4(WR[l])}, 0")
        g.lds_put(vWR1, list(enumerate(D)))
        g.I("s_waitcnt lgkmcnt(0)"); g.I("s_barrier")
        g.I(f"""
        ds_read2st64_b32 {r2(X)}, {vRD1} offset0:0 offset1:3
        ds_read2st64_b32 {r2(X+2)}, {vRD1} offset0:6 offset1:9
        ds_read2st64_b32 {r2(Y)}, {vRD1} offset0:2 offset1:5
        ds_read2st64_b32 {r2(Y+2)}, {vRD1} offset0:8 offset1:11
        s_waitcnt lgkmcnt(0)
        """)
        for b in (X, Y): g.I(f"v_add_f32 v{b}, v{b}, v{b+1}"); g.I(f"v_add_f32 v{b+2}, v{b+2}, v{b+3}")
        for b in (X, Y): g.I(f"v_add_f32 v{b}, v{b}, v{b+2}")
        g.I(f"""
        v_permlane32_swap_b32 v{X}, v{Y}
        v_add_f32 v{X}, v{X}, v{Y}
        v_add_f32_dpp v{X}, v{X}, v{X} quad_perm:[1,0,3,2] {DPPM}
        s_mov_b32 exec_lo, 0x55555555
        s_mov_b32 exec_hi, 0x55555555
        v_mul_f32 v{X}, v{X}, {vF}
        """)
    g.C(f"""final reduction: one returning f64 add per 16-byte cell; even lanes add the gated partial, odd lanes add 1.0 to
    the cell's arrival counter.  The wave whose add is the last of the {NADD} owns the total and writes that output element.""")
    g.I(f"""
    v_cvt_f64_f32 {r2(OLD)}, v{X}
    s_mov_b64 exec, {sAM}
    L_{role}_acc:
    buffer_atomic_add_f64 {r2(OLD)}, {vACC}, {WS_}, {sFP} offen sc0 sc1
    v_cvt_f64_f32 {r2(OWN)}, v{X}
    s_mov_b32 s4, 0xaaaaaaaa
    s_mov_b32 s5, 0xaaaaaaaa
    s_add_u32 {sSPIN}, {sSPIN}, 1
    s_waitcnt vmcnt(0)
    v_add_f64 {r2(T[0])}, {r2(OLD)}, {r2(OWN)}
    v_subrev_u32 v{T[2]}, {sLO}, v{OLD}
    v_cmp_ne_u32 s[18:19], {sHI}, v{OLD+1}
    v_cvt_f32_f64 v{T[0]}, {r2(T[0])}
    v_cmp_lt_u32 s[14:15], {NADD-1}, v{T[2]}
    v_cmp_eq_u32 vcc, {NADD-1}, v{T[2]}
    v_cvt_pk_bf16_f32 v{T[0]}, v{T[0]}, v{T[0]}
    s_andn2_b64 vcc, vcc, s[18:19]
    s_and_b64 vcc, vcc, s[4:5]
    s_lshr_b64 exec, vcc, 1
    s_cbranch_execz L_{role}_notlast
    buffer_store_short v{T[0]}, {vOUT}, {O_}, {sRED} offen
    s_cmp_lg_u32 {sRED}, 0
    s_cbranch_scc1 L_{role}_notlast
    s_and_b64 exec, exec, 1
    s_cbranch_execz L_{role}_notlast
    """)
    g.C("every workgroup has read ws[0] by now: retire this launch's tag")
    g.I(f"""
    v_mov_b32 v{T[1]}, {sTAG}
    buffer_store_dword v{T[1]}, {vOUT}, {WS_}, 0 offen {'' if 'rplain' in opt else 'sc1'}
    L_{role}_notlast:
    s_or_b64 s[18:19], s[18:19], s[14:15]
    s_and_b64 s[18:19], s[18:19], s[4:5]
    s_cbranch_scc1 L_{role}_again
    s_endpgm
    """)
    g.cold += [f"L_{role}_again:", "  ; a cell was not reset yet: the add is void (the reset overwrites it), so repeat it",
               "  s_mov_b64 exec, s[18:19]", f"  v_mov_b32 v{OLD}, 0", f"  v_mov_b32 v{OLD+1}, 0x3ff00000",
               "  s_lshr_b64 exec, s[18:19], 1", f"  v_cvt_f64_f32 {r2(OLD)}, v{X}", "  s_or_b64 exec, exec, s[18:19]",
               f"  s_cmp_gt_u32 {sSPIN}, {SPINMAX}", f"  s_cbranch_scc0 L_{role}_acc"]
    return g.L + ["  ; ---- rarely taken paths"] + g.cold + [f"L_{role}_exit:", "  s_endpgm"]

DOC = f"""; One launch, 256 workgroups (one per CU) x 8 waves; workgroup = (head h, slice c), every byte is read once (nt).
"""
def gen(path, scramble=0, fast=False, opt=()):
    e = G("E")
    if scramble:
        e.I("s_cmp_ge_u32 s2, 256"); e.I("s_cbranch_scc1 L_F_exit")
        if scramble == 1: e.I("s_lshr_b32 s3, s2, 3\ns_and_b32 s2, s2, 7\ns_lshl_b32 s2, s2, 5\ns_or_b32 s2, s2, s3")
        elif scramble == 2: e.I("s_cmp_ge_u32 s2, 160\ns_cselect_b32 s3, 1, 0\ns_xor_b32 s2, s2, s3")
        elif scramble == 3: e.I("s_bfe_u32 s3, s2, 0x20003\ns_cmp_eq_u32 s3, 3\ns_cselect_b32 s3, 1, 0\ns_xor_b32 s2, s2, s3")
        elif scramble == 4: e.I("s_mul_i32 s2, s2, 37\ns_lshr_b32 s3, s2, 4\ns_and_b32 s3, s3, 7\ns_and_b32 s2, s2, 255\ns_xor_b32 s2, s2, s3")
    ptr(e, A_, 24); ptr(e, X_, 0)
    e.I("s_load_dwordx4 s[16:19], s[0:1], 48")
    if not fast: ptr(e, K_, 8); ptr(e, WS_, 96)
    e.I("s_cmpk_ge_u32 s2, 160\ns_cbranch_scc1 L_F")
    L = fix_hazards(e.L + program("A", fast, opt)) + fix_hazards(program("F", fast, opt))
    txt = HDR + f"; @launch grid=(256,1,1) block=(512,1,1) lds={LDS_BYTES}\n" + DOC
    txt += '.amdgcn_target "amdgcn-amd-amdhsa--gfx950"\n.text\n' + f".globl {KN}_kernel\n.p2align 8\n.type {KN}_kernel,@function\n{KN}_kernel:\n"
    txt += "\n".join(L) + "\n"
    txt += f""".section .rodata,"a"
.p2align 6
.amdhsa_kernel {KN}_kernel
  .amdhsa_next_free_vgpr 256
  .amdhsa_next_free_sgpr 96
  .amdhsa_accum_offset 256
  .amdhsa_group_segment_fixed_size 0
  .amdhsa_kernarg_size 104
  .amdhsa_user_sgpr_count 2
  .amdhsa_user_sgpr_kernarg_segment_ptr 1
  .amdhsa_system_sgpr_workgroup_id_x 1
.end_amdhsa_kernel
"""
    open(path, "w").write(txt)
FINAL = dict(fast=True, opt=("mlfull", "alias", "rplain", "wpre1", "opw4"))
if __name__ == "__main__":
    gen("final.s", **FINAL)
    for k in (1, 2, 3, 4): gen(f"final_sc{k}.s", scramble=k, **FINAL)
```

```python
import sys, math, struct
from asmlib import Prog, fix_hazards
KN = "gated_mix__sliding_block_cached__glu_gated_swiglu__decode"
HDR = open("cdna_kernels/" + KN + ".s.ref").read().split("; Override launch")[0]
def f32(x): return "0x%08x" % struct.unpack("<I", struct.pack("<f", x))[0]
LOG2E = 1.4426950408889634
CS = LOG2E

QS, HS, ML, OS, FS = 0x1000, 0x50000, 0x70000, 0x80000, 0xC0000
WS_BYTES = 0x400000
OOB = 0x1000000
R0, R1, R2 = 0, 12544, 12544 + 8704
QL = R2 + 12800; MLL = QL + 384; GL = MLL + 64; SAV = GL + 64; LDS_BYTES = SAV + 1024
sH, sC, sW, sTAG = "s30", "s31", "s32", "s33"
K_, V_, A_, W_, X_, WS_, O_, G_ = "s[36:39]", "s[40:43]", "s[44:47]", "s[48:51]", "s[52:55]", "s[56:59]", "s[60:63]", "s[64:67]"
sPUB1, sQP, sMLP, sMLQ, sOP, sP2, sFP, sRED, sSPIN, sCS, sRHO, sL = ["s%d" % i for i in range(71, 83)]
sXCC, sLOC, sFL, sXM, sAM = "s8", "s3", "s17", "s[20:21]", "s[22:23]"
sG, sHI, sLO = "s9", "s6", "s7"
KSO = ["s70", "s24", "s25", "s26", "s27", "s28", "s29", "s16"]
vKV, vA, vX = "v1", "v2", "v3"
M = [4, 5, 6, 7]; AB = [8, 12]; D = [16, 20, 24]; Q = [28, 32, 36]; S = list(range(40, 48)); P = 48
vWR0, vRD0, vU16, vPOLL, vBP, vF = "v52", "v53", "v54", "v55", "v56", "v57"
T = list(range(58, 64))
KR = [64 + 4*i for i in range(24)]; VR = [160 + 4*i for i in range(24)]
AR = VR[18:24]; WR = KR[0:6]
vW, vWR1, vRD1, vML = "v88", "v89", "v90", "v91"
AB3 = [92, 96, 100]; PO = 104
XX, GG = 208, 216
vG, vL4, vL16 = "v224", "v225", "v226"
vACC, vOUT = "v148", "v149"; OWN, OLD = 150, 152
SPM, SPD, SPI = 112, 116, 120
NADD = 56; SPINMAX = 0x800000; SHIFT = 53
def r4(b): return f"v[{b}:{b+3}]"
def r2(b): return f"v[{b}:{b+1}]"
DPPM = "row_mask:0xf bank_mask:0xf"
MF = "v_mfma_f32_16x16x32_bf16"

class G(Prog):
    def __init__(self, role):
        super().__init__(); self.role = role; self.cold = []; self.bigonly = True
    def C(self, s):
        for l in s.strip("\n").split("\n"): self.L.append("  ; " + l.strip())
    def exec_(self, m):
        if isinstance(m, str): self.I(f"s_mov_b64 exec, {m}")
        elif m == -1: self.I("s_mov_b64 exec, -1")
        elif m < 2**31: self.I(f"s_mov_b64 exec, {hex(m)}")
        elif m & 0xffffffff == 0xffffffff: self.I(f"s_mov_b32 exec_hi, {hex(m >> 32)}")
        else: self.I(f"s_mov_b32 exec_lo, {hex(m & 0xffffffff)}"); self.I(f"s_mov_b32 exec_hi, {hex(m >> 32)}")
    def red_low(self, regs, op="add"):
        for pat in ("quad_perm:[1,0,3,2]", "quad_perm:[2,3,0,1]", "row_half_mirror"):
            for r in regs: self.I(f"v_{op}_f32_dpp v{r}, v{r}, v{r} {pat} {DPPM}")
    def red_up(self, regs, tmps, op="add", do32=True):
        if do32:
            for r, t in zip(regs, tmps): self.I(f"v_permlane32_swap_b32 v{r}, v{t}")
            for r, t in zip(regs, tmps): self.I(f"v_{op}_f32 v{r}, v{r}, v{t}")
        for r, t in zip(regs, tmps): self.I(f"v_permlane16_swap_b32 v{r}, v{t}")
        for r, t in zip(regs, tmps): self.I(f"v_{op}_f32 v{r}, v{r}, v{t}")
        for r in regs: self.I(f"v_{op}_f32_dpp v{r}, v{r}, v{r} row_ror:8 {DPPM}")
    def build_a(self, dst, src):
        for w in range(4): self.I(f"v_and_b32 v{dst+w}, v{src}, v{M[w]}")
    def poll_issue(self, name, soff, mask=-1, voff=vPOLL):
        if mask != -1:
            for t in range(3): self.I(f"v_mov_b32 v{P+t}, 0")
            self.exec_(mask)
        self.vmem(name, f"buffer_load_dwordx4 {r4(P)}, {voff}, {WS_}, {soff} offen sc1")
        if mask != -1: self.exec_(-1)
    def republish(self, lab):
        return ["  ; repeat this wave's first hand-off write-through (once) for readers behind another L2",
                f"  s_cmp_lg_u32 {sFL}, 0", f"  s_cbranch_scc1 {lab}_np", f"  s_mov_b32 {sFL}, 1",
                "  s_mov_b64 s[18:19], exec", "  s_mov_b64 exec, 0xff",
                f"  s_lshl_b32 s34, {sW}, 7", f"  v_add_u32 v{T[4]}, s34, {vU16}",
                f"  ds_read_b128 {r4(T[0])}, v{T[4]} offset:{SAV}", "  s_waitcnt lgkmcnt(0)",
                f"  buffer_store_dwordx4 {r4(T[0])}, {vU16}, {WS_}, {sPUB1} offen sc1",
                "  s_waitcnt vmcnt(0)", "  s_mov_b64 exec, s[18:19]", f"{lab}_np:"]
    def poll_check(self, name, soff, mask=-1, voff=vPOLL):
        lab = f"L_{self.role}_{name}"
        assert name not in self.vm
        if mask != -1: self.exec_(mask)
        self.I(f"{lab}_chk:")
        if name in ("qpoll", "hpoll"):
            self.I(f"v_subrev_u32 v{T[0]}, {sTAG}, v{P+3}")
            self.I(f"v_cmp_lt_u32 vcc, 15, v{T[0]}")
            self.I(f"s_cbranch_vccnz {lab}_retry")
            self.I(f"v_cmp_ne_u32 vcc, {sXCC}, v{T[0]}")
            if name == "qpoll": self.I(f"s_mov_b32 {sLOC}, 1")
            self.I(f"s_cbranch_vccnz {lab}_remote")
            self.I(f"{lab}_back:")
            self.cold += [f"{lab}_remote:"] + self.republish(lab + "_rm") + ([f"  s_mov_b32 {sLOC}, 0"] if name == "qpoll" else []) + [f"  s_branch {lab}_back"]
        else:
            self.I(f"v_cmp_ne_u32 vcc, {sTAG}, v{P+3}")
            self.I(f"s_cbranch_vccnz {lab}_retry")
        if mask != -1: self.exec_(-1)
        self.cold += [f"{lab}_retry:"] + self.republish(lab + "_rt") + [
              f"  buffer_load_dwordx4 {r4(P)}, {voff}, {WS_}, {soff} offen sc1",
              f"  s_add_u32 {sSPIN}, {sSPIN}, 1", f"  s_cmp_gt_u32 {sSPIN}, {SPINMAX}", f"  s_cbranch_scc1 L_{self.role}_exit",
              "  s_waitcnt vmcnt(0)", f"  s_branch {lab}_chk"]
    def lds_put(self, addr, accs):
        self.exec_(sXM)
        for l, d in accs: self.I(f"ds_write_b128 {addr}, {r4(d)} offset:{l*256}")
        self.exec_(-1)
    def loc_store(self, name, txt):
        lab = f"L_{self.role}_{name}"
        self.I(f"s_cbranch_scc0 {lab}_far")
        self.vmem(name, txt)
        self.I(f"{lab}_done:")
        self.cold += [f"{lab}_far:", f"  {txt} sc1", f"  s_branch {lab}_done"]
    def first_handoff(self, claim=False):
        self.exec_(0xff)
        self.vmem("pub1", f"buffer_store_dwordx4 {r4(P)}, {vU16}, {WS_}, {sPUB1} offen")
        if claim:
            self.C("same bytes into this wave's o slot (wrong tag for o): later polls of it hit in L2")
            self.vmem("claim", f"buffer_store_dwordx4 {r4(P)}, {vU16}, {WS_}, {sOP} offen")
        self.I(f"s_lshl_b32 s34, {sW}, 7"); self.I(f"v_add_u32 v{T[4]}, s34, {vU16}")
        self.I(f"ds_write_b128 v{T[4]}, {r4(P)} offset:{SAV}")
        self.exec_(-1)
    def red192(self, pre):
        for t in range(3): self.I(f"ds_read2_b32 {r2(T[0]+2*t)}, {vRD0} offset0:{t} offset1:{192+t}")
        self.I(pre)
        for t in range(3):
            self.I(f"s_waitcnt lgkmcnt({2-t})")
            self.I(f"v_add_f32 v{P+t}, v{T[0]+2*t}, v{T[0]+2*t+1}")
        self.red_up([P, P+1, P+2], T[0:3])
    def transpose_sum(self, n, src=P):
        for t in range(n): self.I(f"ds_bpermute_b32 v{T[t]}, {vBP}, v{src+t}")
        self.I("s_waitcnt lgkmcnt(0)")
        self.red_low(T[0:n])

def srd(g, name, nbytes):
    b = int(name[2:name.index(":")])
    g.I(f"s_mov_b32 s{b+2}, {nbytes}"); g.I(f"s_mov_b32 s{b+3}, 0x20000")
def ptr(g, name, off):
    b = int(name[2:name.index(":")])
    g.I(f"s_load_dwordx2 s[{b}:{b+1}], s[0:1], {off}")

def program(role, fast=False, opt=()):
    g = G(role); A = role == "A"
    val = lambda k, d: next((int(o[len(k):]) for o in opt if o.startswith(k) and o[len(k):].lstrip("-").isdigit()), d)
    AS = val("as", 8)
    g.I(f"L_{role}:")
    if not A: g.I("s_cmp_ge_u32 s2, 256"); g.I("s_cbranch_scc1 L_F_exit")
    g.C("h = 4*(wg&7) + ((wg>>3)&3), c = wg>>5, w = wave, a8 = lane>>3, u = lane&7")
    if A and fast:
        g.C("wq rows 128c + 16w + 2*a8 + t (t = 0,1), columns 192h .. 192h+191; first loads leave from the first 128 code bytes")
        g.I(f"""
        s_and_b32 s34, s2, 7
        s_bfe_u32 {sRHO}, s2, 0x20003
        s_lshl2_add_u32 {sH}, s34, {sRHO}
        s_lshr_b32 {sC}, s2, 5
        s_lshl_b32 s34, {sC}, 12
        s_add_u32 s34, s34, {sH}
        v_lshrrev_b32 v{T[2]}, 3, v0
        v_and_b32 {vU16}, 7, v0
        v_lshl_add_u32 {vA}, v{T[2]}, 6, s34
        v_lshlrev_b32 {vU16}, 4, {vU16}
        s_movk_i32 s34, 384
        v_mad_u32_u24 {vA}, {vA}, s34, {vU16}
        s_waitcnt lgkmcnt(0)
        """)
        for l in range(3): g.vmem(f"A{l}", f"global_load_dwordx4 {r4(AR[l])}, {vA}, s[44:45] offset:{l*128} nt")
        g.I(f"s_lshl_b32 s35, {sC}, 8\nv_lshl_add_u32 {vX}, v{T[2]}, 2, s35")
        g.vmem("x", f"global_load_dword v{P}, {vX}, s[52:53]")
        ptr(g, WS_, 96); ptr(g, K_, 8)
        g.I(f"v_lshrrev_b32 v{T[0]}, 6, v0\nv_bfe_u32 v{T[1]}, v0, 3, 3\nv_readfirstlane_b32 {sW}, v{T[0]}\ns_movk_i32 s9, 12288")
        srd(g, A_, 640*12288)
    if fast and not A: ptr(g, WS_, 96); ptr(g, K_, 8)
    if not (A and fast):
        g.I(f"""
        s_and_b32 s34, s2, 7
        s_bfe_u32 {sRHO}, s2, 0x20003
        v_lshrrev_b32 v{T[0]}, 6, v0
        s_lshl2_add_u32 {sH}, s34, {sRHO}
        s_lshr_b32 {sC}, s2, 5
        v_and_b32 {vU16}, 7, v0
        v_lshlrev_b32 {vU16}, 4, {vU16}
        v_readfirstlane_b32 {sW}, v{T[0]}
        v_bfe_u32 v{T[1]}, v0, 3, 3
        """)
        srd(g, X_, 1280)
    a_loads = []
    if A:
        if not fast:
            g.C("wq rows 128c + 16w + 2*a8 + t (t = 0,1), columns 192h .. 192h+191")
            srd(g, A_, 640*12288)
            g.I(f"""
            s_mul_i32 s34, {sC}, {128*12288}
            s_mul_i32 s35, {sH}, 384
            s_add_u32 s34, s34, s35
            v_lshrrev_b32 v{T[2]}, 3, v0
            v_mul_u32_u24 {vA}, 24576, v{T[2]}
            v_add3_u32 {vA}, {vA}, {vU16}, s34
            s_lshl_b32 s35, {sC}, 8
            v_lshl_add_u32 {vX}, v{T[2]}, 2, s35
            s_movk_i32 s9, 12288
            s_waitcnt lgkmcnt(0)
            """)
            g.vmem("x", f"buffer_load_dword v{P}, {vX}, {X_}, 0 offen")
        for j in range(6):
            t, l = divmod(j, 3)
            a_loads.append(f"buffer_load_dwordx4 {r4(AR[j])}, {vA}, {A_}, {'s9' if t else '0'} offen offset:{l*128} nt")
    else:
        g.C("""hidden units 64l .. 64l+63 with l = 3*(wg&7) + c - 5; rho = h&3 picks a quarter of the 640 rows
        waves 0-3 read w1, waves 4-7 read w3: rows 160rho + 40(w&3) + 4*a8 + t (t<4) and + 32 + a8""")
        srd(g, A_, 640*3072)
        g.I(f"""
        s_movk_i32 s68, 6144
        s_mul_i32 {sL}, s34, 3
        s_add_u32 {sL}, {sL}, {sC}
        s_sub_u32 {sL}, {sL}, 5
        s_and_b32 s34, {sW}, 3
        s_mul_i32 s34, s34, 40
        s_mul_i32 s35, {sRHO}, 160
        s_add_u32 s34, s34, s35
        s_lshl_b32 s35, s34, 1
        v_lshl_add_u32 {vX}, v{T[1]}, 3, s35
        v_lshl_add_u32 v{T[3]}, v{T[1]}, 1, s35
        s_mul_i32 s34, s34, 3072
        s_lshl_b32 s35, {sL}, 7
        s_add_u32 s34, s34, s35
        v_mul_u32_u24 v{T[2]}, 3072, v{T[1]}
        v_add_u32 v{T[4]}, s34, {vU16}
        v_lshl_add_u32 {vA}, v{T[2]}, 2, v{T[4]}
        v_add_u32 v{Q[0]+2}, v{T[2]}, v{T[4]}
        s_mov_b32 s9, {32*3072}
        s_cmp_ge_u32 {sW}, 4
        s_waitcnt lgkmcnt(0)
        s_cselect_b32 s44, s18, s16
        s_cselect_b32 s45, s19, s17
        """)
        g.vmem("x0", f"buffer_load_dwordx2 {r2(P)}, {vX}, {X_}, 0 offen")
        g.vmem("x", f"buffer_load_ushort v{P+2}, v{T[3]}, {X_}, 0 offen offset:64")
        for t in range(4):
            a_loads.append(f"buffer_load_dwordx4 {r4(AR[t])}, {vA}, {A_}, {'s68' if t//2 else '0'} offen offset:{(t%2)*3072} nt")
        a_loads.append(f"buffer_load_dwordx4 {r4(AR[4])}, v{Q[0]+2}, {A_}, s9 offen nt")
    nA = len(a_loads); nW = 6 if A else 3
    seq = [f"A{j}" for j in range(nA)] + [f"K{j}" for j in range(24)] + [f"V{j}" for j in range(24)] + [f"W{j}" for j in range(nW)]
    pos = [0]; issued = set()
    def issue():
        nm = seq[pos[0]]; pos[0] += 1; issued.add(nm); j = int(nm[1:])
        if nm[0] == "A": g.vmem(nm, a_loads[j])
        elif nm[0] == "W":
            if A and "sp" in opt: g.vmem(nm, f"buffer_load_dwordx4 {r4(WR[j])}, {vW}, {W_}, {'s68' if j%2 else 0} offen offset:{(j//2)*1280} nt")
            elif A: g.vmem(nm, f"buffer_load_dwordx4 {r4(WR[j])}, {vW}, {W_}, 0 offen offset:{(j//2)*1280 + (j%2)*128} nt")
            else: g.vmem(nm, f"buffer_load_dwordx4 {r4(WR[j])}, {('v%d' % AB3[1]) if j == 2 else vW}, {W_}, 0 offen offset:{j*128} nt")
        else:
            reg, sr = (KR[j], K_) if nm[0] == "K" else (VR[j], V_)
            g.vmem(nm, f"buffer_load_dwordx4 {r4(reg)}, {vKV}, {sr}, {KSO[j//3]} offen offset:{(j%3)*128} nt")
    if A and fast: pos[0] = 3; issued.update(("A0", "A1", "A2"))
    else:
        for _ in range(3): issue()
    g.C("remaining set-up runs under the first loads; ws[0] only seeds this launch's hand-off tag")
    if not (A and fast): g.I(f"s_load_dword {sTAG}, s[56:57], 0")
    ptr(g, V_, 16); ptr(g, W_, 32 if A else 64); ptr(g, O_, 80)
    if A and "rearly" in opt: g.I("s_load_dwordx2 s[10:11], s[0:1], 88\ns_mov_b32 s12, 0")
    if not A: ptr(g, G_, 72)
    g.I(f"""
    s_mul_i32 s34, {sH}, 12582912
    s_add_u32 s34, s34, {28672*384}
    v_mul_u32_u24 {vKV}, 384, v{T[1]}
    v_add3_u32 {vKV}, {vKV}, {vU16}, s34
    """)
    srd(g, K_, 402653184); srd(g, V_, 402653184); srd(g, WS_, WS_BYTES); srd(g, W_, 6144*1280 if A else 1536*1280); srd(g, O_, 1280)
    if not A: srd(g, G_, 1280)
    g.I(f"""
    s_mov_b32 {sSPIN}, 0
    s_mov_b32 {sFL}, 0
    s_getreg_b32 {sXCC}, hwreg(HW_REG_XCC_ID, 0, 4)
    s_mov_b32 {sCS}, {f32(CS)}
    s_mov_b32 s20, 0x00ff00ff
    s_mov_b32 s21, 0xff00ff00
    """)
    g.C("lane masks that place one bf16 coefficient at element u of an MFMA A fragment")
    g.I(f"""
    v_and_b32 v{T[0]}, 1, v0
    v_lshlrev_b32 v{T[0]}, 4, v{T[0]}
    v_mov_b32 v{T[2]}, 0xffff
    v_lshlrev_b32 v{T[2]}, v{T[0]}, v{T[2]}
    v_bfe_u32 v{T[0]}, v0, 1, 2
    """)
    for w in range(4): g.I(f"v_cmp_eq_u32 s[{22+2*w}:{23+2*w}], {w}, v{T[0]}")
    for w in range(4): g.I(f"v_cndmask_b32 v{M[w]}, 0, v{T[2]}, s[{22+2*w}:{23+2*w}]")
    g.C("LDS and hand-off slot addresses")
    g.I(f"""
    v_lshl_add_u32 {vPOLL}, v{T[1]}, 10, {vU16}
    v_lshlrev_b32 {vBP}, 1, {vU16}
    v_lshl_add_u32 {vBP}, v{T[1]}, 2, {vBP}
    v_bfe_u32 v{T[0]}, v0, 4, 1
    v_lshlrev_b32 v{T[0]}, 4, v{T[0]}
    v_lshl_add_u32 v{T[0]}, {vU16}, 1, v{T[0]}
    v_bfe_u32 v{T[2]}, v0, 5, 1
    s_mul_i32 s34, {sW}, {392*4}
    v_mul_u32_u24 {vWR0}, 768, v{T[2]}
    v_add3_u32 {vWR0}, {vWR0}, v{T[0]}, s34
    s_mul_i32 s34, {sW}, 96
    v_mul_u32_u24 {vRD0}, {392*4}, v{T[1]}
    v_and_b32 v{T[3]}, 7, v0
    v_mul_u32_u24 v{T[3]}, 12, v{T[3]}
    v_add3_u32 {vRD0}, {vRD0}, v{T[3]}, s34
    s_lshl_b32 s34, {sW}, 7
    s_lshl_b32 s35, {sH}, 13
    s_add_u32 s35, s35, s34
    s_add_u32 {sQP}, s35, {QS}
    s_add_u32 {sP2}, s35, {QS if 'alias' in opt else OS}
    s_lshl_b32 s35, {sC}, 10
    s_add_u32 {sPUB1}, {sQP}, s35
    s_add_u32 {sOP}, {sP2}, s35
    s_lshl_b32 s35, {sH}, 10
    s_add_u32 {sMLQ}, s35, {ML}
    s_lshl_b32 s35, {sC}, 7
    s_add_u32 {sMLP}, {sMLQ}, s35
    """)
    if not A:
        g.I(f"""
        s_lshl_b32 s35, {sL}, 12
        s_add_u32 s35, s35, s34
        s_add_u32 {sP2}, s35, {HS}
        s_lshl_b32 s35, {sRHO}, 10
        s_add_u32 {sPUB1}, {sP2}, s35
        {"s_mov_b32 " + sPUB1 + ", " + sOP if "halias" in opt else ""}
        {"s_lshl_b32 s35, " + sRHO + ", 13" if "halias" in opt else ""}
        {"s_sub_u32 " + sP2 + ", " + sOP + ", s35" if "halias" in opt else ""}
        s_mul_i32 s34, {sW}, {136*4}
        s_add_u32 s34, s34, {R1}
        v_lshlrev_b32 v{Q[0]}, 8, v{T[2]}
        v_add3_u32 v{Q[0]}, v{Q[0]}, v{T[0]}, s34
        s_lshl_b32 s34, {sW}, 5
        s_add_u32 s34, s34, {R1}
        v_mul_u32_u24 v{Q[0]+1}, {136*4}, v{T[1]}
        v_lshrrev_b32 v{T[3]}, 2, {vU16}
        v_add3_u32 v{Q[0]+1}, v{Q[0]+1}, v{T[3]}, s34
        s_cmp_eq_u32 {sW}, 0
        s_cselect_b32 s34, 0, {OOB}
        v_and_b32 {vL16}, 63, v0
        v_lshl_add_u32 {vL4}, {vL16}, 2, s34
        v_lshl_add_u32 {vL16}, {vL16}, 4, s34
        """)
    g.C(f"step t of this wave covers the 8 keys of block (64t + 32(c>>2) + 4w + (c&3) + {SHIFT}h) mod 512 of the head's window")
    perm = next((o[4:] for o in opt if o.startswith("perm")), None)
    if perm:
        g.I("s_mov_b32 s35, 0")
        for k, r in (("c", sC), ("w", sW)):
            for b, p in enumerate([5 - i for i, ch in enumerate(perm) if ch == k][::-1]):
                g.I(f"s_bfe_u32 s34, {r}, {0x10000 + b}\ns_lshl_b32 s34, s34, {p}\ns_or_b32 s35, s35, s34")
    else: g.I(f"s_lshr_b32 s35, {sC}, 2\ns_lshl3_add_u32 s35, s35, {sW}\ns_and_b32 s34, {sC}, 3\ns_lshl2_add_u32 s35, s35, s34")
    g.I(f"s_mul_i32 s34, {sH}, {val('sh', SHIFT)}"); g.I("s_add_u32 s35, s35, s34")
    for t in range(8):
        if t: g.I("s_add_u32 s35, s35, 64")
        g.I("s_and_b32 s34, s35, 511"); g.I(f"s_mul_i32 {KSO[t]}, s34, 3072")
    for t in range(8): g.I(f"v_mov_b32 v{S[t]}, 0")
    g.I("s_mov_b32 s14, 0x01000100"); g.I("s_mov_b32 s15, 0x03020302")
    if A and fast:
        g.I("s_waitcnt lgkmcnt(0)"); g.I(f"s_load_dword {sTAG}, s[56:57], 0")
        g.cap(0)
        for _ in range(3): issue()
    g.wait("x")
    st = dict(aj=0, pub1=False, q=False, qi=False, kt=0, sm=False, vj=0, mli=not A, ml=not A, hi=False, h=A, addr=False, gi=False, g=A)
    landed = lambda x: x in issued and x not in g.vm
    gone = lambda x: x not in g.vm
    g.C("x @ W on this slice: masked-diagonal A fragment (x[row] at element u) times the raw rows as B")
    for t in range(2):
        g.I(f"v_perm_b32 v{T[0]}, v{P}, v{P}, s{14+t}"); g.build_a(AB[t], T[0])
    def a_mfma(j):
        if A:
            t, l = divmod(j, 3)
            g.I(f"{MF} {r4(D[l])}, {r4(AB[t])}, {r4(AR[j])}, {r4(D[l]) if t else 0}")
        else:
            g.I(f"{MF} {r4(D[0])}, {r4(AB[j%2])}, {r4(AR[j])}, {r4(D[0]) if j else 0}")
            if j + 2 < 5:
                t = j + 2
                g.I(f"v_perm_b32 v{T[0]}, v{P+t//2}, v{P+t//2}, s{14+t%2}"); g.build_a(AB[t%2], T[0])
    def pub1():
        g.C("cross-wave sum in LDS, then publish {values, tag + XCC id} granules (plain store: stays in this L2;\na reader behind another L2 makes the wave repeat it write-through, see the *_remote / *_retry blocks)")
        g.lds_put(vWR0 if A else f"v{Q[0]}", list(enumerate(D)) if A else [(0, D[0])])
        g.I("s_waitcnt lgkmcnt(0)"); g.I(f"s_add_u32 {sTAG}, {sTAG}, 0x9e3779b9"); g.I("s_barrier")
        tagx = f"s_add_u32 s34, {sTAG}, {sXCC}\nv_mov_b32 v{P+3}, s34"
        if A: g.red192(tagx)
        else:
            g.I(f"ds_read2_b32 {r2(T[0])}, v{Q[0]+1} offset0:0 offset1:64")
            g.I(tagx); g.I(f"v_mov_b32 v{P+2}, 0")
            g.I("s_waitcnt lgkmcnt(0)")
            g.I(f"v_add_f32 v{P}, v{T[0]}, v{T[1]}")
            g.red_up([P], [T[0]], do32=False)
            g.I(f"v_permlane32_swap_b32 v{P}, v{P+1}")
        g.first_handoff(claim=not A and "claim" in opt)
        g.I(f"s_lshr_b32 {sHI}, {sTAG}, 26\ns_or_b32 {sHI}, {sHI}, 0x43300000\ns_lshl_b32 {sLO}, {sTAG}, 6")
        if not A and val("init", 0) == 0: acc_init()
    def acc_init():
        g.C("40 waves reset the output accumulator cells {f64 sum = 0, f64 2^52 + 64*tag} (others are out of range)")
        g.I(f"""
        s_lshl_b32 s34, {sL}, 1
        s_add_u32 s34, s34, {sRHO}
        s_sub_u32 s34, s34, 2
        s_cmp_ge_u32 {sRHO}, 2
        s_cselect_b32 s34, s34, 64
        s_cmp_eq_u32 {sW}, {val('iw', 1)}
        s_cselect_b32 s34, s34, 64
        s_cmp_lt_u32 s34, 40
        s_cselect_b32 s34, s34, {OOB >> (AS+2)}
        s_lshl_b32 s34, s34, {AS+2}
        v_bfe_u32 v{T[4]}, v0, 2, 2
        v_and_b32 v{T[5]}, 3, v0
        v_lshlrev_b32 v{T[5]}, 4, v{T[5]}
        v_lshl_add_u32 v{T[4]}, v{T[4]}, {AS}, v{T[5]}
        v_add_u32 v{T[4]}, s34, v{T[4]}
        v_mov_b32 v{T[0]}, 0
        v_mov_b32 v{T[1]}, 0
        v_mov_b32 v{T[2]}, {sLO}
        v_mov_b32 v{T[3]}, {sHI}
        s_mov_b32 s34, {FS}
        """)
        g.exec_(0xffff)
        g.vmem("init", f"buffer_store_dwordx4 {r4(T[0])}, v{T[4]}, {WS_}, s34 offen sc1")
        g.exec_(-1)
    def consume_q():
        g.C("q = sum of the five partials, rounded to bf16, shared through LDS")
        g.poll_check("qpoll", sQP, mask=0xffffffffff)
        g.transpose_sum(3)
        g.I(f"""
        v_cvt_pk_bf16_f32 v{T[0]}, v{T[0]}, v{T[1]}
        v_cvt_pk_bf16_f32 v{T[1]}, v{T[2]}, v{T[2]}
        v_lshrrev_b32 v{T[2]}, 3, v0
        v_mul_u32_u24 v{T[2]}, 6, v{T[2]}
        """)
        g.exec_(0x0101010101010101)
        g.I(f"""
        ds_write_b16 v{T[2]}, v{T[0]} offset:{QL}
        ds_write_b16_d16_hi v{T[2]}, v{T[0]} offset:{QL+2}
        ds_write_b16 v{T[2]}, v{T[1]} offset:{QL+4}
        """)
        g.exec_(-1)
        g.I("s_waitcnt lgkmcnt(0)"); g.I("s_barrier")
        for l in range(3): g.I(f"ds_read_b128 {r4(Q[l])}, {vU16} offset:{QL + l*128}")
        g.I("s_waitcnt lgkmcnt(0)")
    def k_octets(ts):
        g.C(f"scores of key blocks {ts}: bf16(bf16(q.k) / sqrt(192))")
        for l in range(3):
            for e in range(4):
                for t in ts: g.I(f"v_dot2c_f32_bf16 v{S[t]}, v{KR[3*t+l]+e}, v{Q[l]+e}")
        g.red_low([S[t] for t in ts])
        a, b = S[ts[0]], S[ts[-1]]
        for k in range(2):
            g.I(f"v_cvt_pk_bf16_f32 v{a}, v{a}, v{b}")
            if b != a: g.I(f"v_and_b32 v{b}, 0xffff0000, v{a}")
            g.I(f"v_lshlrev_b32 v{a}, 16, v{a}")
            if k == 0:
                for r in sorted({a, b}): g.I(f"v_mul_f32 v{r}, {f32(192.0 ** -0.5)}, v{r}")
    def softmax():
        g.C("p = exp2(log2(e)*(s - m_wave)), then rescaled to the workgroup maximum; {max, sum} of the workgroup is published")
        g.I(f"""
        v_max3_f32 v{T[0]}, v{S[0]}, v{S[1]}, v{S[2]}
        v_max3_f32 v{T[1]}, v{S[3]}, v{S[4]}, v{S[5]}
        v_max3_f32 v{T[0]}, v{T[0]}, v{S[6]}, v{S[7]}
        v_max_f32 v{T[0]}, v{T[0]}, v{T[1]}
        """)
        g.red_up([T[0]], [T[1]], op="max")
        g.I(f"""
        v_mul_f32 v{P}, {sCS}, v{T[0]}
        s_lshl_b32 s35, {sW}, 3
        v_readfirstlane_b32 s34, v{P}
        v_mov_b32 v{T[4]}, s35
        v_lshrrev_b32 v{T[5]}, 1, {vU16}
        v_mov_b32 {vF}, s34
        """)
        for t in range(8): g.I(f"v_fma_f32 v{S[t]}, v{S[t]}, {sCS}, -{vF}")
        for t in range(8): g.I(f"v_exp_f32 v{S[t]}, v{S[t]}")
        g.I(f"""
        v_add_f32 v{T[0]}, v{S[0]}, v{S[1]}
        v_add_f32 v{T[1]}, v{S[2]}, v{S[3]}
        v_add_f32 v{T[2]}, v{S[4]}, v{S[5]}
        v_add_f32 v{T[3]}, v{S[6]}, v{S[7]}
        v_add_f32 v{T[0]}, v{T[0]}, v{T[1]}
        v_add_f32 v{T[2]}, v{T[2]}, v{T[3]}
        v_add_f32 v{P+1}, v{T[0]}, v{T[2]}
        """)
        g.red_up([P+1], [T[1]])
        g.exec_(1)
        g.I(f"ds_write_b64 v{T[4]}, {r2(P)} offset:{MLL}")
        g.exec_(-1)
        g.I("s_waitcnt lgkmcnt(0)"); g.I("s_barrier")
        g.I(f"ds_read_b64 {r2(T[0])}, v{T[5]} offset:{MLL}")
        if not A: g.I(f"v_mov_b32 v{T[2]}, 0"); g.I(f"ds_read_b32 v{P+2}, v{T[2]} offset:{GL}")
        g.I(f"v_mov_b32 v{P+3}, {sTAG}")
        g.I(f"s_cmp_eq_u32 {sW}, 0"); g.I(f"s_cselect_b32 s34, 0, {OOB}"); g.I(f"v_add_u32 v{T[4]}, s34, {vU16}")
        g.I("s_waitcnt lgkmcnt(0)")
        g.I(f"v_mov_b32 v{P}, v{T[0]}")
        g.red_low([P], op="max")
        g.I(f"""
        v_sub_f32 v{T[0]}, v{T[0]}, v{P}
        v_sub_f32 {vF}, {vF}, v{P}
        v_exp_f32 v{T[0]}, v{T[0]}
        v_exp_f32 {vF}, {vF}
        v_mul_f32 v{P+1}, v{T[0]}, v{T[1]}
        """)
        for k, pat in enumerate(("quad_perm:[1,0,3,2]", "quad_perm:[2,3,0,1]", "row_half_mirror", None)):
            for t in (2*k, 2*k+1): g.I(f"v_mul_f32 v{S[t]}, v{S[t]}, {vF}")
            if pat: g.I(f"v_add_f32_dpp v{P+1}, v{P+1}, v{P+1} {pat} {DPPM}")
        g.exec_(0xff if "mlfull" in opt else 1)
        g.I(f"s_cmp_lg_u32 {sLOC}, 0")
        g.loc_store("pubml", f"buffer_store_dwordx4 {r4(P)}, v{T[4]}, {WS_}, {sMLP} offen")
        g.exec_(-1)
        for t in range(8): g.I(f"v_cvt_pk_bf16_f32 v{S[t]}, v{S[t]}, v{S[t]}")
        if not A: g.I(f"v_sub_f32 {vF}, 1.0, v{P+2}"); g.I(f"v_cvt_pk_bf16_f32 {vF}, {vF}, {vF}"); g.I(f"v_lshlrev_b32 {vF}, 16, {vF}")
        g.build_a(AB[0], S[0])
        g.C("o += p @ V, same masked-diagonal MFMA form")
    def tail_addr():
        NC, SP, RB = (128, 528, R1) if A else (192, 784, R2)
        g.C("addresses of the output projection stage")
        g.I(f"""
        v_bfe_u32 v{T[1]}, v0, 3, 3
        v_bfe_u32 v{T[0]}, v0, 4, 1
        v_lshlrev_b32 v{T[0]}, 4, v{T[0]}
        v_lshl_add_u32 v{T[0]}, {vU16}, 1, v{T[0]}
        v_bfe_u32 v{T[2]}, v0, 5, 1
        s_lshr_b32 s34, {sW}, 1
        s_mul_i32 s34, s34, {SP*4}
        s_and_b32 s35, {sW}, 1
        s_mul_i32 s35, s35, {NC*8}
        s_add_u32 s34, s34, s35
        s_add_u32 s34, s34, {RB}
        v_mul_u32_u24 {vWR1}, {NC*4}, v{T[2]}
        v_add3_u32 {vWR1}, {vWR1}, v{T[0]}, s34
        v_and_b32 v{T[3]}, 1, v0
        v_lshl_add_u32 v{T[3]}, v{T[2]}, 1, v{T[3]}
        v_mul_u32_u24 {vRD1}, {SP*4}, v{T[3]}
        v_and_b32 v{T[3]}, 30, v0
        s_lshl_b32 s34, {sW}, 6
        s_add_u32 s34, s34, {RB}
        v_lshl_add_u32 {vRD1}, v{T[3]}, 1, {vRD1}
        v_add_u32 {vRD1}, s34, {vRD1}
        v_lshl_add_u32 {vOUT}, v{T[2]}, 8, v{T[3]}
        v_lshrrev_b32 v{T[3]}, 1, {vU16}
        v_lshl_add_u32 {vACC}, v{T[1]}, {AS}, v{T[3]}
        v_mul_u32_u24 v{T[3]}, {7*(4 << AS)}, v{T[2]}
        v_add_u32 {vACC}, {vACC}, v{T[3]}
        v_mov_b32 v{OLD}, 0
        v_mov_b32 v{OLD+1}, 0x3ff00000
        """)
        if A:
            g.C("wo rows 192h + 24w + 3*a8 + t (t<3), columns 128c .. 128c+127")
            g.I(f"""
            v_lshlrev_b32 {vML}, 7, v{T[1]}
            s_mul_i32 s34, {sH}, 192
            s_mul_i32 s35, {sW}, 24
            s_add_u32 s34, s34, s35
            s_mul_i32 s34, s34, 1280
            s_lshl_b32 s35, {sC}, 8
            s_add_u32 s34, s34, s35
            v_mul_u32_u24 {vW}, 3840, v{T[1]}
            v_add3_u32 {vW}, {vW}, {vU16}, s34
            s_lshl3_add_u32 {sRED}, {sC}, {sW}
            s_mov_b32 s22, -1
            s_mov_b32 s23, 0
            """)
            if "sp" in opt:
                g.C("""load 2p+s reads rows 24w + 3(4s+g) + p, g = lane>>4, 256 bytes each; a pair of loads is the B operand of one 2:4-sparse
                MFMA whose A fragment holds the single value z[3*a8+p] at logical k = 8*a8 + u""")
                g.I(f"""
                s_movk_i32 s68, 15360
                v_bfe_u32 v{T[0]}, v0, 4, 2
                v_mul_u32_u24 {vW}, 3840, v{T[0]}
                v_and_b32 v{T[0]}, 15, v0
                v_lshl_add_u32 {vW}, v{T[0]}, 4, {vW}
                v_add_u32 {vW}, s34, {vW}
                v_bfe_u32 v{T[2]}, v0, 3, 1
                v_lshl_add_u32 {vWR1}, v{T[2]}, 8, {vWR1}
                v_and_b32 v{T[2]}, 3, v0
                v_cmp_eq_u32 vcc, 3, v{T[2]}
                v_mov_b32 v{T[3]}, 0xffff
                v_mov_b32 v{T[4]}, 0xffff0000
                v_cndmask_b32 v{T[3]}, v{T[3]}, v{T[4]}, vcc
                v_cndmask_b32 v{T[2]}, v{T[2]}, 0, vcc
                v_or_b32 v{T[2]}, 12, v{T[2]}
                v_mul_u32_u24 v{SPI}, 0x1111, v{T[2]}
                v_bfe_u32 v{T[0]}, v0, 2, 2
                """)
                for w in range(4):
                    g.I(f"v_cmp_eq_u32 vcc, {w}, v{T[0]}"); g.I(f"v_mov_b32 v{SPD+w}, 0"); g.I(f"v_cndmask_b32 v{SPM+w}, 0, v{T[3]}, vcc")
        else:
            g.C("w2 rows 64l + 8w + a8, columns from 0 / 192 / 384 / 512 (192,192,128,128 wide) by rho")
            g.I(f"""
            s_mul_i32 {sRED}, {sRHO}, 12
            s_min_u32 {sRED}, {sRED}, 32
            s_lshl_b32 s34, {sL}, 6
            s_lshl_b32 s35, {sW}, 3
            s_add_u32 s34, s34, s35
            s_mul_i32 s34, s34, 1280
            s_lshl_b32 s35, {sRED}, 5
            s_add_u32 s34, s34, s35
            v_mul_u32_u24 {vW}, 1280, v{T[1]}
            v_add3_u32 {vW}, {vW}, {vU16}, s34
            s_cmp_ge_u32 {sRHO}, 2
            s_cselect_b32 s34, {OOB}, 0
            s_cselect_b32 s23, 0, -1
            v_add_u32 v{AB3[1]}, s34, {vW}
            s_cmp_ge_u32 {sW}, 4
            s_cselect_b32 s23, 0, s23
            s_mov_b32 s22, -1
            s_add_u32 {sRED}, {sRED}, {sW}
            """)
        g.I(f"s_lshl_b32 {sFP}, {sRED}, {AS+2}\ns_add_u32 {sFP}, {sFP}, {FS}\ns_lshl_b32 {sRED}, {sRED}, 5\ns_add_u32 s5, {sTAG}, 16")
    def consume_ml():
        g.C("softmax weight of each of the 8 partial o's: exp2(m_c - M) / L; the gate g rides in an F granule")
        g.poll_check("mlpoll", sMLQ, voff=vML)
        if "rearly" in opt:
            g.C("all 8 workgroups of this head hold the tag now: count heads in d_debug[0]")
            g.I(f"s_or_b32 s34, {sC}, {sW}\ns_cbranch_scc1 L_A_nocount\ns_mov_b32 s12, 1\ns_atomic_add s12, s[10:11], 0 glc\nL_A_nocount:")
        g.I(f"v_mov_b32 v{T[0]}, v{P}")
        g.I(f"v_readlane_b32 {sG}, v{P+2}, 40")
        g.red_up([T[0]], [T[1]], op="max")
        g.I(f"""
        v_readfirstlane_b32 s34, v{T[0]}
        v_subrev_f32 {vF}, s34, v{P}
        v_exp_f32 {vF}, {vF}
        v_mul_f32 v{T[0]}, {vF}, v{P+1}
        """)
        g.red_up([T[0]], [T[1]])
        g.I(f"v_rcp_f32 v{T[0]}, v{T[0]}\nv_readfirstlane_b32 s34, v{T[0]}\nv_mul_f32 {vF}, s34, {vF}")
        if "gfold" in opt: g.I(f"v_mul_f32 {vF}, {sG}, {vF}")
        if "tpoll" in opt: g.I(f"ds_bpermute_b32 {vF}, {vBP}, {vF}\nds_bpermute_b32 v154, {vBP}, {vPOLL}\ns_waitcnt lgkmcnt(0)")
    def consume_h():
        g.C("h = silu(gate) * up from the four row-quarter partials")
        g.poll_check("hpoll", sP2, mask=0xffffffff)
        g.transpose_sum(2)
        g.I(f"""
        v_cvt_pk_bf16_f32 v{T[0]}, v{T[0]}, v{T[1]}
        v_and_b32 v{T[1]}, 0xffff0000, v{T[0]}
        v_lshlrev_b32 v{T[0]}, 16, v{T[0]}
        v_mul_f32 v{T[2]}, {f32(-LOG2E)}, v{T[0]}
        v_exp_f32 v{T[2]}, v{T[2]}
        v_add_f32 v{T[2]}, 1.0, v{T[2]}
        v_rcp_f32 v{T[2]}, v{T[2]}
        v_mul_f32 v{T[0]}, v{T[0]}, v{T[2]}
        v_cvt_pk_bf16_f32 v{T[0]}, v{T[0]}, v{T[0]}
        v_lshlrev_b32 v{T[0]}, 16, v{T[0]}
        v_mul_f32 v{T[0]}, v{T[0]}, v{T[1]}
        v_cvt_pk_bf16_f32 v{T[0]}, v{T[0]}, v{T[0]}
        """)
        g.build_a(AB3[0], T[0])
    def g_issue():
        g.C("gate operands (in range for wave 0 only)")
        g.vmem("gx4", f"buffer_load_dwordx4 {r4(XX)}, {vL16}, {X_}, 0 offen")
        g.vmem("gx1", f"buffer_load_dword v{XX+4}, {vL4}, {X_}, 0 offen offset:1024")
        g.vmem("gg4", f"buffer_load_dwordx4 {r4(GG)}, {vL16}, {G_}, 0 offen")
        g.vmem("gg1", f"buffer_load_dword v{GG+4}, {vL4}, {G_}, 0 offen offset:1024")
    def g_compute():
        g.C("g = sigmoid(sum(x * gate_w)) -> LDS")
        g.I(f"s_cmp_lg_u32 {sW}, 0"); g.I("s_cbranch_scc1 L_F_nog")
        g.I(f"v_mov_b32 {vG}, 0")
        for k in range(5):
            g.I(f"""
            v_lshlrev_b32 v{T[1]}, 16, v{XX+k}
            v_lshlrev_b32 v{T[2]}, 16, v{GG+k}
            v_and_b32 v{XX+k}, 0xffff0000, v{XX+k}
            v_and_b32 v{GG+k}, 0xffff0000, v{GG+k}
            v_mul_f32 v{T[1]}, v{T[1]}, v{T[2]}
            v_mul_f32 v{T[2]}, v{XX+k}, v{GG+k}
            v_cvt_pk_bf16_f32 v{T[1]}, v{T[1]}, v{T[2]}
            v_lshlrev_b32 v{T[2]}, 16, v{T[1]}
            v_and_b32 v{T[1]}, 0xffff0000, v{T[1]}
            v_add_f32 {vG}, {vG}, v{T[2]}
            v_add_f32 {vG}, {vG}, v{T[1]}
            """)
        gi = int(vG[1:])
        g.red_low([gi]); g.red_up([gi], [T[1]])
        g.I(f"""
        v_cvt_pk_bf16_f32 {vG}, {vG}, {vG}
        v_lshlrev_b32 {vG}, 16, {vG}
        v_mul_f32 {vG}, {f32(-LOG2E)}, {vG}
        v_exp_f32 {vG}, {vG}
        v_add_f32 {vG}, 1.0, {vG}
        v_rcp_f32 {vG}, {vG}
        v_cvt_pk_bf16_f32 {vG}, {vG}, {vG}
        v_lshlrev_b32 {vG}, 16, {vG}
        s_mov_b64 exec, 1
        ds_write_b32 {vL4}, {vG} offset:{GL}
        s_mov_b64 exec, -1
        L_F_nog:
        """)
    def v_mfma(j):
        t, l = divmod(j, 3)
        g.I(f"{MF} {r4(D[l])}, {r4(AB[t%2])}, {r4(VR[j])}, {r4(D[l]) if t else 0}")
        if l == 0 and t < 7: g.build_a(AB[(t+1)%2], S[t+1])
    def work():
        while st["aj"] < nA and landed(f"A{st['aj']}"):
            a_mfma(st["aj"]); st["aj"] += 1
        if st["aj"] == nA and not st["pub1"]: pub1(); st["pub1"] = True
        if not st["g"] and not st["gi"] and f"K{val('gp', 7)}" in issued: g_issue(); st["gi"] = True
        elif st["gi"] and not st["g"] and gone("gg1"): g_compute(); st["g"] = True
        if not st["qi"] and f"K{val('qp', 17)}" in issued:
            assert st["g"]
            g.poll_issue("qpoll", sQP, mask=0xffffffffff); st["qi"] = True
        elif st["qi"] and not st["q"] and gone("qpoll"): consume_q(); st["q"] = True
        elif st["q"] and st["kt"] < 8:
            ts = [t for t in range(st["kt"], min(st["kt"]+2, 8)) if landed(f"K{3*t+2}")]
            if ts: k_octets(ts); st["kt"] = ts[-1] + 1
        if not A and val("init", 0) and not st.get("ini") and seq[nA + val("init", 0)] in issued: acc_init(); st["ini"] = True
        if st["kt"] == 8 and not st["sm"]: softmax(); st["sm"] = True
        elif st["sm"] and not st["addr"]: tail_addr(); st["addr"] = True
        elif st["addr"] and not st["h"] and not st["hi"]:
            if "halias" in opt: g.I(f"v_bfe_u32 {vPOLL}, v0, 3, 3\nv_lshl_add_u32 {vPOLL}, {vPOLL}, 13, {vU16}")
            g.poll_issue("hpoll", sP2, mask=0xffffffff); st["hi"] = True
        elif st["hi"] and not st["h"] and gone("hpoll"): consume_h(); st["h"] = True
        if st["addr"] and not st["mli"] and f"V{val('mlp', 14)}" in issued: g.poll_issue("mlpoll", sMLQ, voff=vML); st["mli"] = True
        elif st["mli"] and not st["ml"] and gone("mlpoll"): consume_ml(); st["ml"] = True
        if st["sm"]:
            while st["vj"] < 24 and landed(f"V{st['vj']}"): v_mfma(st["vj"]); st["vj"] += 1
    starts = {}
    if "a4v" in opt and A: starts = {"V12": False, "V13": True, "V15": False, "V17": True, "V18": False}
    if "a4k" in opt and A: starts = {"K6": False, "K7": True, "K9": False, "K11": True, "K12": False}
    if "fk" in opt and not A: starts = {"K0": False, "K1": True}
    if A and fast: work()
    while st["vj"] < 24:
        g.cap(0); issue()
        while pos[0] < len(seq) and not starts.get(seq[pos[0]], int(seq[pos[0]][1:]) % 3 == 0): issue()
        work(); work()
    assert st["ml"] and st["h"] and st["g"]
    g.C("publish this workgroup's partial o with tag + 16 (L2-resident when every reader shares this L2, else write-through);\nan A slot reuses its q slot: all 8 workgroups of the head consumed q before they published {max, sum}")
    for _ in range(val("wpre", 0)):
        if pos[0] < len(seq): issue()
    g.lds_put(vWR0, list(enumerate(D)))
    for _ in range(val("wmid", 0)):
        if pos[0] < len(seq): issue()
    g.I("s_waitcnt lgkmcnt(0)"); g.I("s_barrier")
    for _ in range(val("wbar", 0)):
        if pos[0] < len(seq): issue()
    g.red192(f"v_mov_b32 v{P+3}, s5\ns_cmp_lg_u32 {sLOC}, 0")
    g.exec_(0xff)
    g.loc_store("pubo", f"buffer_store_dwordx4 {r4(P)}, {vU16}, {WS_}, {sOP} offen")
    g.exec_(-1)
    early = A and "early" in opt
    if early: g.vmem("op0", f"buffer_load_dwordx4 {r4(PO)}, {vPOLL}, {WS_}, {sP2} offen sc1")
    while pos[0] < len(seq): issue()
    X, Y = AB3[0], AB3[1]
    if A and "rearly" in opt:
        g.I("s_and_b32 s12, s12, 31\ns_cmp_eq_u32 s12, 31\ns_cbranch_scc1 L_A_retire\nL_A_retired:")
        g.cold += ["L_A_retire:", "  ; last head counted: every workgroup has read ws[0], retire this launch's tag",
                   "  s_mov_b64 exec, 1", f"  v_mov_b32 v{T[4]}, {sTAG}", f"  buffer_store_dword v{T[4]}, {vU16}, {WS_}, 0 offen {'' if 'rep' in opt else 'sc1'}", "  s_mov_b64 exec, -1", "  s_branch L_A_retired"]
    if A:
        g.C("gather the 8 partial o's of rows 24w .. 24w+23, weight, sum, multiply with wo")
        tp = "tpoll" in opt
        if early:
            g.wait("op0"); keep = list(g.vm)
            g.I(f"v_cmp_ne_u32 vcc, s5, v{PO+3}")
            for t in range(3): g.I(f"v_mul_f32 v{PO+t}, v{PO+t}, {vF}")
            g.I("s_cbranch_vccz L_A_ook")
        if val("opw", 3) >= 0: g.wait(f"W{val('opw', 3)}")
        g.I("L_A_opoll:")
        g.I(f"buffer_load_dwordx4 {r4(PO)}, {'v154' if tp else vPOLL}, {WS_}, {sP2} offen sc1")
        g.I(f"s_add_u32 {sSPIN}, {sSPIN}, 1\ns_cmp_gt_u32 {sSPIN}, {SPINMAX}\ns_cbranch_scc1 L_A_exit")
        g.I("s_waitcnt vmcnt(0)"); g.vm = []
        g.I(f"v_cmp_ne_u32 vcc, s5, v{PO+3}")
        for t in range(3): g.I(f"v_mul_f32 v{T[t] if tp else PO+t}, v{PO+t}, {vF}")
        g.I("s_cbranch_vccnz L_A_opoll")
        if early: g.I("L_A_ook:"); g.vm = keep
        if tp: g.red_low(T[0:3])
        else: g.transpose_sum(3, src=PO)
        for t in range(3): g.I(f"v_cvt_pk_bf16_f32 v{T[t]}, v{T[t]}, v{T[t]}")
        if "sp" in opt:
            ba = lambda p: [g.I(f"v_and_b32 v{AB3[p]+w}, v{T[p]}, v{SPM+w}") for w in range(4)]
            sm = lambda p: g.I(f"v_smfmac_f32_16x16x64_bf16 {r4(SPD)}, {r4(AB3[p])}, v[{WR[2*p]}:{WR[2*p]+7}], v{SPI}")
            ba(0); ba(1); sm(0); ba(2); sm(1); sm(2)
            g.I("s_nop 7")
            g.I(f"ds_write_b128 {vWR1}, {r4(SPD)}")
        else:
            g.build_a(AB3[0], T[0]); g.build_a(AB3[1], T[1])
            for l in range(2): g.I(f"{MF} {r4(D[l])}, {r4(AB3[0])}, {r4(WR[l])}, 0")
            g.build_a(AB3[2], T[2])
            for t in range(1, 3):
                for l in range(2):
                    g.wait(f"W{2*t+l}")
                    g.I(f"{MF} {r4(D[l])}, {r4(AB3[t])}, {r4(WR[2*t+l])}, {r4(D[l])}")
            g.lds_put(vWR1, [(0, D[0]), (1, D[1])])
        g.I("s_waitcnt lgkmcnt(0)"); g.I("s_barrier")
        g.I(f"""
        ds_read2st64_b32 {r2(X)}, {vRD1} offset0:0 offset1:2
        ds_read2st64_b32 {r2(X+2)}, {vRD1} offset0:4 offset1:6
        s_waitcnt lgkmcnt(1)
        v_add_f32 v{X}, v{X}, v{X+1}
        s_waitcnt lgkmcnt(0)
        v_add_f32 v{X+2}, v{X+2}, v{X+3}
        v_add_f32 v{X}, v{X}, v{X+2}
        v_permlane32_swap_b32 v{X}, v{X+1}
        v_add_f32 v{X}, v{X}, v{X+1}
        v_add_f32_dpp v{X}, v{X}, v{X} quad_perm:[1,0,3,2] {DPPM}
        s_mov_b64 exec, 0x55555555
        {"" if "gfold" in opt else f"v_mul_f32 v{X}, {sG}, v{X}"}
        """)
    else:
        g.C("h @ w2 on this slice")
        for l in range(3):
            g.wait(f"W{l}")
            g.I(f"{MF} {r4(D[l])}, {r4(AB3[0])}, {r4(WR[l])}, 0")
        g.lds_put(vWR1, list(enumerate(D)))
        g.I("s_waitcnt lgkmcnt(0)"); g.I("s_barrier")
        g.I(f"""
        ds_read2st64_b32 {r2(X)}, {vRD1} offset0:0 offset1:3
        ds_read2st64_b32 {r2(X+2)}, {vRD1} offset0:6 offset1:9
        ds_read2st64_b32 {r2(Y)}, {vRD1} offset0:2 offset1:5
        ds_read2st64_b32 {r2(Y+2)}, {vRD1} offset0:8 offset1:11
        s_waitcnt lgkmcnt(0)
        """)
        for b in (X, Y): g.I(f"v_add_f32 v{b}, v{b}, v{b+1}"); g.I(f"v_add_f32 v{b+2}, v{b+2}, v{b+3}")
        for b in (X, Y): g.I(f"v_add_f32 v{b}, v{b}, v{b+2}")
        g.I(f"""
        v_permlane32_swap_b32 v{X}, v{Y}
        v_add_f32 v{X}, v{X}, v{Y}
        v_add_f32_dpp v{X}, v{X}, v{X} quad_perm:[1,0,3,2] {DPPM}
        s_mov_b32 exec_lo, 0x55555555
        s_mov_b32 exec_hi, 0x55555555
        v_mul_f32 v{X}, v{X}, {vF}
        """)
    g.C(f"""final reduction: one returning f64 add per 16-byte cell; even lanes add the gated partial, odd lanes add 1.0 to
    the cell's arrival counter.  The wave whose add is the last of the {NADD} owns the total and writes that output element.""")
    g.I(f"""
    v_cvt_f64_f32 {r2(OLD)}, v{X}
    s_mov_b64 exec, {sAM}
    L_{role}_acc:
    buffer_atomic_add_f64 {r2(OLD)}, {vACC}, {WS_}, {sFP} offen sc0 sc1
    v_cvt_f64_f32 {r2(OWN)}, v{X}
    s_mov_b32 s4, 0xaaaaaaaa
    s_mov_b32 s5, 0xaaaaaaaa
    s_add_u32 {sSPIN}, {sSPIN}, 1
    s_waitcnt vmcnt(0)
    v_add_f64 {r2(T[0])}, {r2(OLD)}, {r2(OWN)}
    v_subrev_u32 v{T[2]}, {sLO}, v{OLD}
    v_cmp_ne_u32 s[18:19], {sHI}, v{OLD+1}
    v_cvt_f32_f64 v{T[0]}, {r2(T[0])}
    v_cmp_lt_u32 s[14:15], {NADD-1}, v{T[2]}
    v_cmp_eq_u32 vcc, {NADD-1}, v{T[2]}
    v_cvt_pk_bf16_f32 v{T[0]}, v{T[0]}, v{T[0]}
    s_andn2_b64 vcc, vcc, s[18:19]
    s_and_b64 vcc, vcc, s[4:5]
    s_lshr_b64 exec, vcc, 1
    s_cbranch_execz L_{role}_notlast
    buffer_store_short v{T[0]}, {vOUT}, {O_}, {sRED} offen
    """)
    if "rearly" not in opt:
        g.I(f"s_cmp_lg_u32 {sRED}, 0\ns_cbranch_scc1 L_{role}_notlast\ns_and_b64 exec, exec, 1\ns_cbranch_execz L_{role}_notlast")
        g.C("every workgroup has read ws[0] by now: retire this launch's tag")
        g.I(f"v_mov_b32 v{T[1]}, {sTAG}\nbuffer_store_dword v{T[1]}, {vOUT}, {WS_}, 0 offen {'' if 'rplain' in opt else 'sc1'}")
    g.I(f"""
    L_{role}_notlast:
    s_or_b64 s[18:19], s[18:19], s[14:15]
    s_and_b64 s[18:19], s[18:19], s[4:5]
    s_cbranch_scc1 L_{role}_again
    s_endpgm
    """)
    g.cold += [f"L_{role}_again:", "  ; a cell was not reset yet: the add is void (the reset overwrites it), so repeat it",
               "  s_mov_b64 exec, s[18:19]", f"  v_mov_b32 v{OLD}, 0", f"  v_mov_b32 v{OLD+1}, 0x3ff00000",
               "  s_lshr_b64 exec, s[18:19], 1", f"  v_cvt_f64_f32 {r2(OLD)}, v{X}", "  s_or_b64 exec, exec, s[18:19]",
               f"  s_cmp_gt_u32 {sSPIN}, {SPINMAX}", f"  s_cbranch_scc0 L_{role}_acc"]
    return g.L + ["  ; ---- rarely taken paths"] + g.cold + [f"L_{role}_exit:", "  s_endpgm"]

DOC = f"""; One launch, 256 workgroups (one per CU) x 8 waves; workgroup = (head h, slice c), every byte is read once (nt).
"""
def gen(path, scramble=0, fast=False, opt=()):
    e = G("E")
    if scramble:
        e.I("s_cmp_ge_u32 s2, 256"); e.I("s_cbranch_scc1 L_F_exit")
        if scramble == 1: e.I("s_lshr_b32 s3, s2, 3\ns_and_b32 s2, s2, 7\ns_lshl_b32 s2, s2, 5\ns_or_b32 s2, s2, s3")
        elif scramble == 2: e.I("s_cmp_ge_u32 s2, 160\ns_cselect_b32 s3, 1, 0\ns_xor_b32 s2, s2, s3")
        elif scramble == 3: e.I("s_bfe_u32 s3, s2, 0x20003\ns_cmp_eq_u32 s3, 3\ns_cselect_b32 s3, 1, 0\ns_xor_b32 s2, s2, s3")
        elif scramble == 4: e.I("s_mul_i32 s2, s2, 37\ns_lshr_b32 s3, s2, 4\ns_and_b32 s3, s3, 7\ns_and_b32 s2, s2, 255\ns_xor_b32 s2, s2, s3")
    ptr(e, A_, 24); ptr(e, X_, 0)
    e.I("s_load_dwordx4 s[16:19], s[0:1], 48")
    if not fast: ptr(e, K_, 8); ptr(e, WS_, 96)
    e.I("s_cmpk_ge_u32 s2, 160\ns_cbranch_scc1 L_F")
    L = fix_hazards(e.L + program("A", fast, opt)) + fix_hazards(program("F", fast, opt))
    txt = HDR + f"; @launch grid=(256,1,1) block=(512,1,1) lds={LDS_BYTES}\n" + DOC
    txt += '.amdgcn_target "amdgcn-amd-amdhsa--gfx950"\n.text\n' + f".globl {KN}_kernel\n.p2align 8\n.type {KN}_kernel,@function\n{KN}_kernel:\n"
    txt += "\n".join(L) + "\n"
    txt += f""".section .rodata,"a"
.p2align 6
.amdhsa_kernel {KN}_kernel
  .amdhsa_next_free_vgpr 256
  .amdhsa_next_free_sgpr 96
  .amdhsa_accum_offset 256
  .amdhsa_group_segment_fixed_size 0
  .amdhsa_kernarg_size 104
  .amdhsa_user_sgpr_count 2
  .amdhsa_user_sgpr_kernarg_segment_ptr 1
  .amdhsa_system_sgpr_workgroup_id_x 1
.end_amdhsa_kernel
"""
    open(path, "w").write(txt)
FINAL = dict(fast=True, opt=("mlfull", "alias", "wpre1", "opw4", "sp", "rearly"))
if __name__ == "__main__":
    gen("final.s", **FINAL)
    for k in (1, 2, 3, 4): gen(f"final_sc{k}.s", scramble=k, **FINAL)
```

```python
import sys, math, struct
from asmlib import Prog, fix_hazards
KN = "gated_mix__sliding_block_cached__glu_gated_swiglu__decode"
HDR = open("cdna_kernels/" + KN + ".s.ref").read().split("; Override launch")[0]
def f32(x): return "0x%08x" % struct.unpack("<I", struct.pack("<f", x))[0]
LOG2E = 1.4426950408889634
CS = LOG2E

QS, HS, ML, OS, FS = 0x1000, 0x50000, 0x70000, 0x80000, 0xC0000
WS_BYTES = 0x400000
OOB = 0x1000000
R0, R1, R2 = 0, 12544, 12544 + 8704
QL = R2 + 12800; MLL = QL + 384; GL = MLL + 64; SAV = GL + 64; LDS_BYTES = SAV + 1024
sH, sC, sW, sTAG = "s30", "s31", "s32", "s33"
K_, V_, A_, W_, X_, WS_, O_, G_ = "s[36:39]", "s[40:43]", "s[44:47]", "s[48:51]", "s[52:55]", "s[56:59]", "s[60:63]", "s[64:67]"
sPUB1, sQP, sMLP, sMLQ, sOP, sP2, sFP, sRED, sSPIN, sCS, sRHO, sL = ["s%d" % i for i in range(71, 83)]
sXCC, sLOC, sFL, sXM, sAM = "s8", "s3", "s17", "s[20:21]", "s[22:23]"
sG, sHI, sLO = "s9", "s6", "s7"
KSO = ["s70", "s24", "s25", "s26", "s27", "s28", "s29", "s16"]
vKV, vA, vX = "v1", "v2", "v3"
M = [4, 5, 6, 7]; AB = [8, 12]; D = [16, 20, 24]; Q = [28, 32, 36]; S = list(range(40, 48)); P = 48
vWR0, vRD0, vU16, vPOLL, vBP, vF = "v52", "v53", "v54", "v55", "v56", "v57"
T = list(range(58, 64))
KR = [64 + 4*i for i in range(24)]; VR = [160 + 4*i for i in range(24)]
AR = VR[18:24]; WR = KR[0:6]
vW, vWR1, vRD1, vML = "v88", "v89", "v90", "v91"
AB3 = [92, 96, 100]; PO = 104
XX, GG = 208, 216
vG, vL4, vL16 = "v224", "v225", "v226"
vACC, vOUT = "v148", "v149"; OWN, OLD = 150, 152
SPM, SPD, SPI = 112, 116, 120
NADD = 56; SPINMAX = 0x800000; SHIFT = 53
def r4(b): return f"v[{b}:{b+3}]"
def r2(b): return f"v[{b}:{b+1}]"
DPPM = "row_mask:0xf bank_mask:0xf"
MF = "v_mfma_f32_16x16x32_bf16"

class G(Prog):
    def __init__(self, role):
        super().__init__(); self.role = role; self.cold = []; self.bigonly = True
    def C(self, s):
        for l in s.strip("\n").split("\n"): self.L.append("  ; " + l.strip())
    def exec_(self, m):
        if isinstance(m, str): self.I(f"s_mov_b64 exec, {m}")
        elif m == -1: self.I("s_mov_b64 exec, -1")
        elif m < 2**31: self.I(f"s_mov_b64 exec, {hex(m)}")
        elif m & 0xffffffff == 0xffffffff: self.I(f"s_mov_b32 exec_hi, {hex(m >> 32)}")
        else: self.I(f"s_mov_b32 exec_lo, {hex(m & 0xffffffff)}"); self.I(f"s_mov_b32 exec_hi, {hex(m >> 32)}")
    def red_low(self, regs, op="add"):
        for pat in ("quad_perm:[1,0,3,2]", "quad_perm:[2,3,0,1]", "row_half_mirror"):
            for r in regs: self.I(f"v_{op}_f32_dpp v{r}, v{r}, v{r} {pat} {DPPM}")
    def red_up(self, regs, tmps, op="add", do32=True):
        if do32:
            for r, t in zip(regs, tmps): self.I(f"v_permlane32_swap_b32 v{r}, v{t}")
            for r, t in zip(regs, tmps): self.I(f"v_{op}_f32 v{r}, v{r}, v{t}")
        for r, t in zip(regs, tmps): self.I(f"v_permlane16_swap_b32 v{r}, v{t}")
        for r, t in zip(regs, tmps): self.I(f"v_{op}_f32 v{r}, v{r}, v{t}")
        for r in regs: self.I(f"v_{op}_f32_dpp v{r}, v{r}, v{r} row_ror:8 {DPPM}")
    def build_a(self, dst, src):
        for w in range(4): self.I(f"v_and_b32 v{dst+w}, v{src}, v{M[w]}")
    def poll_issue(self, name, soff, mask=-1, voff=vPOLL):
        if mask != -1:
            for t in range(3): self.I(f"v_mov_b32 v{P+t}, 0")
            self.exec_(mask)
        self.vmem(name, f"buffer_load_dwordx4 {r4(P)}, {voff}, {WS_}, {soff} offen sc1")
        if mask != -1: self.exec_(-1)
    def republish(self, lab):
        return ["  ; repeat this wave's first hand-off write-through (once) for readers behind another L2",
                f"  s_cmp_lg_u32 {sFL}, 0", f"  s_cbranch_scc1 {lab}_np", f"  s_mov_b32 {sFL}, 1",
                "  s_mov_b64 s[18:19], exec", "  s_mov_b64 exec, 0xff",
                f"  s_lshl_b32 s34, {sW}, 7", f"  v_add_u32 v{T[4]}, s34, {vU16}",
                f"  ds_read_b128 {r4(T[0])}, v{T[4]} offset:{SAV}", "  s_waitcnt lgkmcnt(0)",
                f"  buffer_store_dwordx4 {r4(T[0])}, {vU16}, {WS_}, {sPUB1} offen sc1",
                "  s_waitcnt vmcnt(0)", "  s_mov_b64 exec, s[18:19]", f"{lab}_np:"]
    def poll_check(self, name, soff, mask=-1, voff=vPOLL):
        lab = f"L_{self.role}_{name}"
        assert name not in self.vm
        if mask != -1: self.exec_(mask)
        self.I(f"{lab}_chk:")
        if name in ("qpoll", "hpoll"):
            self.I(f"v_subrev_u32 v{T[0]}, {sTAG}, v{P+3}")
            self.I(f"v_cmp_lt_u32 vcc, 15, v{T[0]}")
            self.I(f"s_cbranch_vccnz {lab}_retry")
            self.I(f"v_cmp_ne_u32 vcc, {sXCC}, v{T[0]}")
            if name == "qpoll": self.I(f"s_mov_b32 {sLOC}, 1")
            self.I(f"s_cbranch_vccnz {lab}_remote")
            self.I(f"{lab}_back:")
            self.cold += [f"{lab}_remote:"] + self.republish(lab + "_rm") + ([f"  s_mov_b32 {sLOC}, 0"] if name == "qpoll" else []) + [f"  s_branch {lab}_back"]
        else:
            self.I(f"v_cmp_ne_u32 vcc, {sTAG}, v{P+3}")
            self.I(f"s_cbranch_vccnz {lab}_retry")
        if mask != -1: self.exec_(-1)
        self.cold += [f"{lab}_retry:"] + self.republish(lab + "_rt") + [
              f"  buffer_load_dwordx4 {r4(P)}, {voff}, {WS_}, {soff} offen sc1",
              f"  s_add_u32 {sSPIN}, {sSPIN}, 1", f"  s_cmp_gt_u32 {sSPIN}, {SPINMAX}", f"  s_cbranch_scc1 L_{self.role}_exit",
              "  s_waitcnt vmcnt(0)", f"  s_branch {lab}_chk"]
    def lds_put(self, addr, accs):
        self.exec_(sXM)
        for l, d in accs: self.I(f"ds_write_b128 {addr}, {r4(d)} offset:{l*256}")
        self.exec_(-1)
    def loc_store(self, name, txt):
        lab = f"L_{self.role}_{name}"
        self.I(f"s_cbranch_scc0 {lab}_far")
        self.vmem(name, txt)
        self.I(f"{lab}_done:")
        self.cold += [f"{lab}_far:", f"  {txt} sc1", f"  s_branch {lab}_done"]
    def first_handoff(self, claim=False):
        self.exec_(0xff)
        self.vmem("pub1", f"buffer_store_dwordx4 {r4(P)}, {vU16}, {WS_}, {sPUB1} offen")
        if claim:
            self.C("same bytes into this wave's o slot (wrong tag for o): later polls of it hit in L2")
            self.vmem("claim", f"buffer_store_dwordx4 {r4(P)}, {vU16}, {WS_}, {sOP} offen")
        self.I(f"s_lshl_b32 s34, {sW}, 7"); self.I(f"v_add_u32 v{T[4]}, s34, {vU16}")
        self.I(f"ds_write_b128 v{T[4]}, {r4(P)} offset:{SAV}")
        self.exec_(-1)
    def red192(self, pre):
        for t in range(3): self.I(f"ds_read2_b32 {r2(T[0]+2*t)}, {vRD0} offset0:{t} offset1:{192+t}")
        self.I(pre)
        for t in range(3):
            self.I(f"s_waitcnt lgkmcnt({2-t})")
            self.I(f"v_add_f32 v{P+t}, v{T[0]+2*t}, v{T[0]+2*t+1}")
        self.red_up([P, P+1, P+2], T[0:3])
    def transpose_sum(self, n, src=P):
        for t in range(n): self.I(f"ds_bpermute_b32 v{T[t]}, {vBP}, v{src+t}")
        self.I("s_waitcnt lgkmcnt(0)")
        self.red_low(T[0:n])

def srd(g, name, nbytes):
    b = int(name[2:name.index(":")])
    g.I(f"s_mov_b32 s{b+2}, {nbytes}"); g.I(f"s_mov_b32 s{b+3}, 0x20000")
def ptr(g, name, off):
    b = int(name[2:name.index(":")])
    g.I(f"s_load_dwordx2 s[{b}:{b+1}], s[0:1], {off}")

def program(role, fast=False, opt=()):
    g = G(role); A = role == "A"
    val = lambda k, d: next((int(o[len(k):]) for o in opt if o.startswith(k) and o[len(k):].lstrip("-").isdigit()), d)
    AS = val("as", 8)
    g.I(f"L_{role}:")
    if not A: g.I("s_cmp_ge_u32 s2, 256"); g.I("s_cbranch_scc1 L_F_exit")
    g.C("h = 4*(wg&7) + ((wg>>3)&3), c = wg>>5, w = wave, a8 = lane>>3, u = lane&7")
    if A and fast:
        g.C("wq rows 128c + 16w + 2*a8 + t (t = 0,1), columns 192h .. 192h+191; first loads leave from the first 128 code bytes")
        g.I(f"""
        s_and_b32 s34, s2, 7
        s_bfe_u32 {sRHO}, s2, 0x20003
        s_lshl2_add_u32 {sH}, s34, {sRHO}
        s_lshr_b32 {sC}, s2, 5
        s_lshl_b32 s34, {sC}, 12
        s_add_u32 s34, s34, {sH}
        v_lshrrev_b32 v{T[2]}, 3, v0
        v_and_b32 {vU16}, 7, v0
        v_lshl_add_u32 {vA}, v{T[2]}, 6, s34
        v_lshlrev_b32 {vU16}, 4, {vU16}
        s_movk_i32 s34, 384
        v_mad_u32_u24 {vA}, {vA}, s34, {vU16}
        s_waitcnt lgkmcnt(0)
        """)
        for l in range(3): g.vmem(f"A{l}", f"global_load_dwordx4 {r4(AR[l])}, {vA}, s[44:45] offset:{l*128} nt")
        if "fnear" in opt: g.I("s_branch L_A2\n@SPLIT\nL_A2:")
        g.I(f"s_lshl_b32 s35, {sC}, 8\nv_lshl_add_u32 {vX}, v{T[2]}, 2, s35")
        g.vmem("x", f"global_load_dword v{P}, {vX}, s[52:53]")
        ptr(g, WS_, 96); ptr(g, K_, 8)
        g.I(f"v_lshrrev_b32 v{T[0]}, 6, v0\nv_bfe_u32 v{T[1]}, v0, 3, 3\nv_readfirstlane_b32 {sW}, v{T[0]}\ns_movk_i32 s9, 12288")
        srd(g, A_, 640*12288)
    fnear = "fnear" in opt and not A
    if fnear:
        g.C("the last wave visits the far part of this role's code first, so its first lines are fetched early")
        g.I("v_readfirstlane_b32 s34, v0\ns_cmpk_ge_u32 s34, 448\ns_cbranch_scc1 L_F_pad\nL_F_back:")
    elif fast and not A: ptr(g, WS_, 96); ptr(g, K_, 8)
    if not (A and fast):
        g.I(f"""
        s_and_b32 s34, s2, 7
        s_bfe_u32 {sRHO}, s2, 0x20003
        v_lshrrev_b32 v{T[0]}, 6, v0
        s_lshl2_add_u32 {sH}, s34, {sRHO}
        s_lshr_b32 {sC}, s2, 5
        v_and_b32 {vU16}, 7, v0
        v_lshlrev_b32 {vU16}, 4, {vU16}
        v_readfirstlane_b32 {sW}, v{T[0]}
        v_bfe_u32 v{T[1]}, v0, 3, 3
        """)
        srd(g, X_, 1280)
    a_loads = []
    if A:
        if not fast:
            g.C("wq rows 128c + 16w + 2*a8 + t (t = 0,1), columns 192h .. 192h+191")
            srd(g, A_, 640*12288)
            g.I(f"""
            s_mul_i32 s34, {sC}, {128*12288}
            s_mul_i32 s35, {sH}, 384
            s_add_u32 s34, s34, s35
            v_lshrrev_b32 v{T[2]}, 3, v0
            v_mul_u32_u24 {vA}, 24576, v{T[2]}
            v_add3_u32 {vA}, {vA}, {vU16}, s34
            s_lshl_b32 s35, {sC}, 8
            v_lshl_add_u32 {vX}, v{T[2]}, 2, s35
            s_movk_i32 s9, 12288
            s_waitcnt lgkmcnt(0)
            """)
            g.vmem("x", f"buffer_load_dword v{P}, {vX}, {X_}, 0 offen")
        for j in range(6):
            t, l = divmod(j, 3)
            a_loads.append(f"buffer_load_dwordx4 {r4(AR[j])}, {vA}, {A_}, {'s9' if t else '0'} offen offset:{l*128} nt")
    else:
        g.C("""hidden units 64l .. 64l+63 with l = 3*(wg&7) + c - 5; rho = h&3 picks a quarter of the 640 rows
        waves 0-3 read w1, waves 4-7 read w3: rows 160rho + 40(w&3) + 4*a8 + t (t<4) and + 32 + a8""")
        srd(g, A_, 640*3072)
        g.I(f"""
        s_movk_i32 s68, 6144
        s_mul_i32 {sL}, s34, 3
        s_add_u32 {sL}, {sL}, {sC}
        s_sub_u32 {sL}, {sL}, 5
        s_and_b32 s34, {sW}, 3
        s_mul_i32 s34, s34, 40
        s_mul_i32 s35, {sRHO}, 160
        s_add_u32 s34, s34, s35
        s_lshl_b32 s35, s34, 1
        v_lshl_add_u32 {vX}, v{T[1]}, 3, s35
        v_lshl_add_u32 v{T[3]}, v{T[1]}, 1, s35
        s_mul_i32 s34, s34, 3072
        s_lshl_b32 s35, {sL}, 7
        s_add_u32 s34, s34, s35
        v_mul_u32_u24 v{T[2]}, 3072, v{T[1]}
        v_add_u32 v{T[4]}, s34, {vU16}
        v_lshl_add_u32 {vA}, v{T[2]}, 2, v{T[4]}
        v_add_u32 v{Q[0]+2}, v{T[2]}, v{T[4]}
        s_mov_b32 s9, {32*3072}
        s_cmp_ge_u32 {sW}, 4
        s_waitcnt lgkmcnt(0)
        s_cselect_b32 s44, s18, s16
        s_cselect_b32 s45, s19, s17
        """)
        def xloads():
            g.vmem("x0", f"buffer_load_dwordx2 {r2(P)}, {vX}, {X_}, 0 offen")
            g.vmem("x", f"buffer_load_ushort v{P+2}, v{T[3]}, {X_}, 0 offen offset:64")
        if not fnear: xloads()
        for t in range(4):
            a_loads.append(f"buffer_load_dwordx4 {r4(AR[t])}, {vA}, {A_}, {'s68' if t//2 else '0'} offen offset:{(t%2)*3072} nt")
        a_loads.append(f"buffer_load_dwordx4 {r4(AR[4])}, v{Q[0]+2}, {A_}, s9 offen nt")
    nA = len(a_loads); nW = 6 if A else 3
    seq = [f"A{j}" for j in range(nA)] + [f"K{j}" for j in range(24)] + [f"V{j}" for j in range(24)] + [f"W{j}" for j in range(nW)]
    pos = [0]; issued = set()
    def issue():
        nm = seq[pos[0]]; pos[0] += 1; issued.add(nm); j = int(nm[1:])
        if nm[0] == "A": g.vmem(nm, a_loads[j])
        elif nm[0] == "W":
            if A and "sp" in opt: g.vmem(nm, f"buffer_load_dwordx4 {r4(WR[j])}, {vW}, {W_}, {'s68' if j%2 else 0} offen offset:{(j//2)*1280} nt")
            elif A: g.vmem(nm, f"buffer_load_dwordx4 {r4(WR[j])}, {vW}, {W_}, 0 offen offset:{(j//2)*1280 + (j%2)*128} nt")
            else: g.vmem(nm, f"buffer_load_dwordx4 {r4(WR[j])}, {('v%d' % AB3[1]) if j == 2 else vW}, {W_}, 0 offen offset:{j*128} nt")
        else:
            reg, sr = (KR[j], K_) if nm[0] == "K" else (VR[j], V_)
            g.vmem(nm, f"buffer_load_dwordx4 {r4(reg)}, {vKV}, {sr}, {KSO[j//3]} offen offset:{(j%3)*128} nt")
    if A and fast: pos[0] = 3; issued.update(("A0", "A1", "A2"))
    else:
        for _ in range(3): issue()
    if fnear:
        xloads()
        g.I("s_branch L_F_main\n@SPLIT\nL_F_pad:\ns_branch L_F_back\nL_F_main:")
        ptr(g, WS_, 96); ptr(g, K_, 8)
    g.C("remaining set-up runs under the first loads; ws[0] only seeds this launch's hand-off tag")
    if not (A and fast) and not fnear: g.I(f"s_load_dword {sTAG}, s[56:57], 0")
    ptr(g, V_, 16); ptr(g, W_, 32 if A else 64); ptr(g, O_, 80)
    if A and "rearly" in opt: g.I("s_load_dwordx2 s[10:11], s[0:1], 88\ns_mov_b32 s12, 0")
    if not A: ptr(g, G_, 72)
    g.I(f"""
    s_mul_i32 s34, {sH}, 12582912
    s_add_u32 s34, s34, {28672*384}
    v_mul_u32_u24 {vKV}, 384, v{T[1]}
    v_add3_u32 {vKV}, {vKV}, {vU16}, s34
    """)
    srd(g, K_, 402653184); srd(g, V_, 402653184); srd(g, WS_, WS_BYTES); srd(g, W_, 6144*1280 if A else 1536*1280); srd(g, O_, 1280)
    if not A: srd(g, G_, 1280)
    g.I(f"""
    s_mov_b32 {sSPIN}, 0
    s_mov_b32 {sFL}, 0
    s_getreg_b32 {sXCC}, hwreg(HW_REG_XCC_ID, 0, 4)
    s_mov_b32 {sCS}, {f32(CS)}
    s_mov_b32 s20, 0x00ff00ff
    s_mov_b32 s21, 0xff00ff00
    """)
    g.C("lane masks that place one bf16 coefficient at element u of an MFMA A fragment")
    g.I(f"""
    v_and_b32 v{T[0]}, 1, v0
    v_lshlrev_b32 v{T[0]}, 4, v{T[0]}
    v_mov_b32 v{T[2]}, 0xffff
    v_lshlrev_b32 v{T[2]}, v{T[0]}, v{T[2]}
    v_bfe_u32 v{T[0]}, v0, 1, 2
    """)
    for w in range(4): g.I(f"v_cmp_eq_u32 s[{22+2*w}:{23+2*w}], {w}, v{T[0]}")
    for w in range(4): g.I(f"v_cndmask_b32 v{M[w]}, 0, v{T[2]}, s[{22+2*w}:{23+2*w}]")
    g.C("LDS and hand-off slot addresses")
    g.I(f"""
    v_lshl_add_u32 {vPOLL}, v{T[1]}, 10, {vU16}
    v_lshlrev_b32 {vBP}, 1, {vU16}
    v_lshl_add_u32 {vBP}, v{T[1]}, 2, {vBP}
    v_bfe_u32 v{T[0]}, v0, 4, 1
    v_lshlrev_b32 v{T[0]}, 4, v{T[0]}
    v_lshl_add_u32 v{T[0]}, {vU16}, 1, v{T[0]}
    v_bfe_u32 v{T[2]}, v0, 5, 1
    s_mul_i32 s34, {sW}, {392*4}
    v_mul_u32_u24 {vWR0}, 768, v{T[2]}
    v_add3_u32 {vWR0}, {vWR0}, v{T[0]}, s34
    s_mul_i32 s34, {sW}, 96
    v_mul_u32_u24 {vRD0}, {392*4}, v{T[1]}
    v_and_b32 v{T[3]}, 7, v0
    v_mul_u32_u24 v{T[3]}, 12, v{T[3]}
    v_add3_u32 {vRD0}, {vRD0}, v{T[3]}, s34
    s_lshl_b32 s34, {sW}, 7
    s_lshl_b32 s35, {sH}, 13
    s_add_u32 s35, s35, s34
    s_add_u32 {sQP}, s35, {QS}
    s_add_u32 {sP2}, s35, {QS if 'alias' in opt else OS}
    s_lshl_b32 s35, {sC}, 10
    s_add_u32 {sPUB1}, {sQP}, s35
    s_add_u32 {sOP}, {sP2}, s35
    s_lshl_b32 s35, {sH}, 10
    s_add_u32 {sMLQ}, s35, {ML}
    s_lshl_b32 s35, {sC}, 7
    s_add_u32 {sMLP}, {sMLQ}, s35
    """)
    if not A:
        g.I(f"""
        s_lshl_b32 s35, {sL}, 12
        s_add_u32 s35, s35, s34
        s_add_u32 {sP2}, s35, {HS}
        s_lshl_b32 s35, {sRHO}, 10
        s_add_u32 {sPUB1}, {sP2}, s35
        {"s_mov_b32 " + sPUB1 + ", " + sOP if "halias" in opt else ""}
        {"s_lshl_b32 s35, " + sRHO + ", 13" if "halias" in opt else ""}
        {"s_sub_u32 " + sP2 + ", " + sOP + ", s35" if "halias" in opt else ""}
        s_mul_i32 s34, {sW}, {136*4}
        s_add_u32 s34, s34, {R1}
        v_lshlrev_b32 v{Q[0]}, 8, v{T[2]}
        v_add3_u32 v{Q[0]}, v{Q[0]}, v{T[0]}, s34
        s_lshl_b32 s34, {sW}, 5
        s_add_u32 s34, s34, {R1}
        v_mul_u32_u24 v{Q[0]+1}, {136*4}, v{T[1]}
        v_lshrrev_b32 v{T[3]}, 2, {vU16}
        v_add3_u32 v{Q[0]+1}, v{Q[0]+1}, v{T[3]}, s34
        s_cmp_eq_u32 {sW}, 0
        s_cselect_b32 s34, 0, {OOB}
        v_and_b32 {vL16}, 63, v0
        v_lshl_add_u32 {vL4}, {vL16}, 2, s34
        v_lshl_add_u32 {vL16}, {vL16}, 4, s34
        """)
    g.C(f"step t of this wave covers the 8 keys of block (64t + 32(c>>2) + 4w + (c&3) + {SHIFT}h) mod 512 of the head's window")
    perm = next((o[4:] for o in opt if o.startswith("perm")), None)
    if perm:
        g.I("s_mov_b32 s35, 0")
        for k, r in (("c", sC), ("w", sW)):
            for b, p in enumerate([5 - i for i, ch in enumerate(perm) if ch == k][::-1]):
                g.I(f"s_bfe_u32 s34, {r}, {0x10000 + b}\ns_lshl_b32 s34, s34, {p}\ns_or_b32 s35, s35, s34")
    else: g.I(f"s_lshr_b32 s35, {sC}, 2\ns_lshl3_add_u32 s35, s35, {sW}\ns_and_b32 s34, {sC}, 3\ns_lshl2_add_u32 s35, s35, s34")
    g.I(f"s_mul_i32 s34, {sH}, {val('sh', SHIFT)}"); g.I("s_add_u32 s35, s35, s34")
    for t in range(8):
        if t: g.I("s_add_u32 s35, s35, 64")
        g.I("s_and_b32 s34, s35, 511"); g.I(f"s_mul_i32 {KSO[t]}, s34, 3072")
    for t in range(8): g.I(f"v_mov_b32 v{S[t]}, 0")
    g.I("s_mov_b32 s14, 0x01000100"); g.I("s_mov_b32 s15, 0x03020302")
    if A and fast:
        g.I("s_waitcnt lgkmcnt(0)"); g.I(f"s_load_dword {sTAG}, s[56:57], 0")
        g.cap(0)
        for _ in range(3): issue()
    if fnear: g.I("s_waitcnt lgkmcnt(0)"); g.I(f"s_load_dword {sTAG}, s[56:57], 0")
    g.wait("x")
    st = dict(aj=0, pub1=False, q=False, qi=False, kt=0, sm=False, vj=0, mli=not A, ml=not A, hi=False, h=A, addr=False, gi=False, g=A)
    landed = lambda x: x in issued and x not in g.vm
    gone = lambda x: x not in g.vm
    g.C("x @ W on this slice: masked-diagonal A fragment (x[row] at element u) times the raw rows as B")
    for t in range(2):
        g.I(f"v_perm_b32 v{T[0]}, v{P}, v{P}, s{14+t}"); g.build_a(AB[t], T[0])
    def a_mfma(j):
        if A:
            t, l = divmod(j, 3)
            g.I(f"{MF} {r4(D[l])}, {r4(AB[t])}, {r4(AR[j])}, {r4(D[l]) if t else 0}")
        else:
            g.I(f"{MF} {r4(D[0])}, {r4(AB[j%2])}, {r4(AR[j])}, {r4(D[0]) if j else 0}")
            if j + 2 < 5:
                t = j + 2
                g.I(f"v_perm_b32 v{T[0]}, v{P+t//2}, v{P+t//2}, s{14+t%2}"); g.build_a(AB[t%2], T[0])
    def pub1():
        g.C("cross-wave sum in LDS, then publish {values, tag + XCC id} granules (plain store: stays in this L2;\na reader behind another L2 makes the wave repeat it write-through, see the *_remote / *_retry blocks)")
        g.lds_put(vWR0 if A else f"v{Q[0]}", list(enumerate(D)) if A else [(0, D[0])])
        g.I("s_waitcnt lgkmcnt(0)"); g.I(f"s_add_u32 {sTAG}, {sTAG}, 0x9e3779b9"); g.I("s_barrier")
        tagx = f"s_add_u32 s34, {sTAG}, {sXCC}\nv_mov_b32 v{P+3}, s34"
        if A: g.red192(tagx)
        else:
            g.I(f"ds_read2_b32 {r2(T[0])}, v{Q[0]+1} offset0:0 offset1:64")
            g.I(tagx); g.I(f"v_mov_b32 v{P+2}, 0")
            g.I("s_waitcnt lgkmcnt(0)")
            g.I(f"v_add_f32 v{P}, v{T[0]}, v{T[1]}")
            g.red_up([P], [T[0]], do32=False)
            g.I(f"v_permlane32_swap_b32 v{P}, v{P+1}")
        g.first_handoff(claim=not A and "claim" in opt)
        g.I(f"s_lshr_b32 {sHI}, {sTAG}, 26\ns_or_b32 {sHI}, {sHI}, 0x43300000\ns_lshl_b32 {sLO}, {sTAG}, 6")
        if not A and val("init", 0) == 0: acc_init()
    def acc_init():
        g.C("40 waves reset the output accumulator cells {f64 sum = 0, f64 2^52 + 64*tag} (others are out of range)")
        g.I(f"""
        s_lshl_b32 s34, {sL}, 1
        s_add_u32 s34, s34, {sRHO}
        s_sub_u32 s34, s34, 2
        s_cmp_ge_u32 {sRHO}, 2
        s_cselect_b32 s34, s34, 64
        s_cmp_eq_u32 {sW}, {val('iw', 1)}
        s_cselect_b32 s34, s34, 64
        s_cmp_lt_u32 s34, 40
        s_cselect_b32 s34, s34, {OOB >> (AS+2)}
        s_lshl_b32 s34, s34, {AS+2}
        v_bfe_u32 v{T[4]}, v0, 2, 2
        v_and_b32 v{T[5]}, 3, v0
        v_lshlrev_b32 v{T[5]}, 4, v{T[5]}
        v_lshl_add_u32 v{T[4]}, v{T[4]}, {AS}, v{T[5]}
        v_add_u32 v{T[4]}, s34, v{T[4]}
        v_mov_b32 v{T[0]}, 0
        v_mov_b32 v{T[1]}, 0
        v_mov_b32 v{T[2]}, {sLO}
        v_mov_b32 v{T[3]}, {sHI}
        s_mov_b32 s34, {FS}
        """)
        g.exec_(0xffff)
        g.vmem("init", f"buffer_store_dwordx4 {r4(T[0])}, v{T[4]}, {WS_}, s34 offen sc1")
        g.exec_(-1)
    def consume_q():
        g.C("q = sum of the five partials, rounded to bf16, shared through LDS")
        g.poll_check("qpoll", sQP, mask=0xffffffffff)
        g.transpose_sum(3)
        g.I(f"""
        v_cvt_pk_bf16_f32 v{T[0]}, v{T[0]}, v{T[1]}
        v_cvt_pk_bf16_f32 v{T[1]}, v{T[2]}, v{T[2]}
        v_lshrrev_b32 v{T[2]}, 3, v0
        v_mul_u32_u24 v{T[2]}, 6, v{T[2]}
        """)
        g.exec_(0x0101010101010101)
        g.I(f"""
        ds_write_b16 v{T[2]}, v{T[0]} offset:{QL}
        ds_write_b16_d16_hi v{T[2]}, v{T[0]} offset:{QL+2}
        ds_write_b16 v{T[2]}, v{T[1]} offset:{QL+4}
        """)
        g.exec_(-1)
        g.I("s_waitcnt lgkmcnt(0)"); g.I("s_barrier")
        for l in range(3): g.I(f"ds_read_b128 {r4(Q[l])}, {vU16} offset:{QL + l*128}")
        g.I("s_waitcnt lgkmcnt(0)")
    def k_octets(ts):
        g.C(f"scores of key blocks {ts}: bf16(bf16(q.k) / sqrt(192))")
        for l in range(3):
            for e in range(4):
                for t in ts: g.I(f"v_dot2c_f32_bf16 v{S[t]}, v{KR[3*t+l]+e}, v{Q[l]+e}")
        g.red_low([S[t] for t in ts])
        a, b = S[ts[0]], S[ts[-1]]
        for k in range(2):
            g.I(f"v_cvt_pk_bf16_f32 v{a}, v{a}, v{b}")
            if b != a: g.I(f"v_and_b32 v{b}, 0xffff0000, v{a}")
            g.I(f"v_lshlrev_b32 v{a}, 16, v{a}")
            if k == 0:
                for r in sorted({a, b}): g.I(f"v_mul_f32 v{r}, {f32(192.0 ** -0.5)}, v{r}")
    def softmax():
        g.C("p = exp2(log2(e)*(s - m_wave)), then rescaled to the workgroup maximum; {max, sum} of the workgroup is published")
        g.I(f"""
        v_max3_f32 v{T[0]}, v{S[0]}, v{S[1]}, v{S[2]}
        v_max3_f32 v{T[1]}, v{S[3]}, v{S[4]}, v{S[5]}
        v_max3_f32 v{T[0]}, v{T[0]}, v{S[6]}, v{S[7]}
        v_max_f32 v{T[0]}, v{T[0]}, v{T[1]}
        """)
        g.red_up([T[0]], [T[1]], op="max")
        g.I(f"""
        v_mul_f32 v{P}, {sCS}, v{T[0]}
        s_lshl_b32 s35, {sW}, 3
        v_readfirstlane_b32 s34, v{P}
        v_mov_b32 v{T[4]}, s35
        v_lshrrev_b32 v{T[5]}, 1, {vU16}
        v_mov_b32 {vF}, s34
        """)
        for t in range(8): g.I(f"v_fma_f32 v{S[t]}, v{S[t]}, {sCS}, -{vF}")
        for t in range(8): g.I(f"v_exp_f32 v{S[t]}, v{S[t]}")
        g.I(f"""
        v_add_f32 v{T[0]}, v{S[0]}, v{S[1]}
        v_add_f32 v{T[1]}, v{S[2]}, v{S[3]}
        v_add_f32 v{T[2]}, v{S[4]}, v{S[5]}
        v_add_f32 v{T[3]}, v{S[6]}, v{S[7]}
        v_add_f32 v{T[0]}, v{T[0]}, v{T[1]}
        v_add_f32 v{T[2]}, v{T[2]}, v{T[3]}
        v_add_f32 v{P+1}, v{T[0]}, v{T[2]}
        """)
        g.red_up([P+1], [T[1]])
        g.exec_(1)
        g.I(f"ds_write_b64 v{T[4]}, {r2(P)} offset:{MLL}")
        g.exec_(-1)
        g.I("s_waitcnt lgkmcnt(0)"); g.I("s_barrier")
        g.I(f"ds_read_b64 {r2(T[0])}, v{T[5]} offset:{MLL}")
        if not A: g.I(f"v_mov_b32 v{T[2]}, 0"); g.I(f"ds_read_b32 v{P+2}, v{T[2]} offset:{GL}")
        g.I(f"v_mov_b32 v{P+3}, {sTAG}")
        g.I(f"s_cmp_eq_u32 {sW}, 0"); g.I(f"s_cselect_b32 s34, 0, {OOB}"); g.I(f"v_add_u32 v{T[4]}, s34, {vU16}")
        g.I("s_waitcnt lgkmcnt(0)")
        g.I(f"v_mov_b32 v{P}, v{T[0]}")
        g.red_low([P], op="max")
        g.I(f"""
        v_sub_f32 v{T[0]}, v{T[0]}, v{P}
        v_sub_f32 {vF}, {vF}, v{P}
        v_exp_f32 v{T[0]}, v{T[0]}
        v_exp_f32 {vF}, {vF}
        v_mul_f32 v{P+1}, v{T[0]}, v{T[1]}
        """)
        for k, pat in enumerate(("quad_perm:[1,0,3,2]", "quad_perm:[2,3,0,1]", "row_half_mirror", None)):
            for t in (2*k, 2*k+1): g.I(f"v_mul_f32 v{S[t]}, v{S[t]}, {vF}")
            if pat: g.I(f"v_add_f32_dpp v{P+1}, v{P+1}, v{P+1} {pat} {DPPM}")
        g.exec_(0xff if "mlfull" in opt else 1)
        g.I(f"s_cmp_lg_u32 {sLOC}, 0")
        g.loc_store("pubml", f"buffer_store_dwordx4 {r4(P)}, v{T[4]}, {WS_}, {sMLP} offen")
        g.exec_(-1)
        for t in range(8): g.I(f"v_cvt_pk_bf16_f32 v{S[t]}, v{S[t]}, v{S[t]}")
        if not A: g.I(f"v_sub_f32 {vF}, 1.0, v{P+2}"); g.I(f"v_cvt_pk_bf16_f32 {vF}, {vF}, {vF}"); g.I(f"v_lshlrev_b32 {vF}, 16, {vF}")
        g.build_a(AB[0], S[0])
        g.C("o += p @ V, same masked-diagonal MFMA form")
    def tail_addr():
        NC, SP, RB = (128, 528, R1) if A else (192, 784, R2)
        g.C("addresses of the output projection stage")
        g.I(f"""
        v_bfe_u32 v{T[1]}, v0, 3, 3
        v_bfe_u32 v{T[0]}, v0, 4, 1
        v_lshlrev_b32 v{T[0]}, 4, v{T[0]}
        v_lshl_add_u32 v{T[0]}, {vU16}, 1, v{T[0]}
        v_bfe_u32 v{T[2]}, v0, 5, 1
        s_lshr_b32 s34, {sW}, 1
        s_mul_i32 s34, s34, {SP*4}
        s_and_b32 s35, {sW}, 1
        s_mul_i32 s35, s35, {NC*8}
        s_add_u32 s34, s34, s35
        s_add_u32 s34, s34, {RB}
        v_mul_u32_u24 {vWR1}, {NC*4}, v{T[2]}
        v_add3_u32 {vWR1}, {vWR1}, v{T[0]}, s34
        v_and_b32 v{T[3]}, 1, v0
        v_lshl_add_u32 v{T[3]}, v{T[2]}, 1, v{T[3]}
        v_mul_u32_u24 {vRD1}, {SP*4}, v{T[3]}
        v_and_b32 v{T[3]}, 30, v0
        s_lshl_b32 s34, {sW}, 6
        s_add_u32 s34, s34, {RB}
        v_lshl_add_u32 {vRD1}, v{T[3]}, 1, {vRD1}
        v_add_u32 {vRD1}, s34, {vRD1}
        v_lshl_add_u32 {vOUT}, v{T[2]}, 8, v{T[3]}
        v_lshrrev_b32 v{T[3]}, 1, {vU16}
        v_lshl_add_u32 {vACC}, v{T[1]}, {AS}, v{T[3]}
        v_mul_u32_u24 v{T[3]}, {7*(4 << AS)}, v{T[2]}
        v_add_u32 {vACC}, {vACC}, v{T[3]}
        v_mov_b32 v{OLD}, 0
        v_mov_b32 v{OLD+1}, 0x3ff00000
        """)
        if A:
            g.C("wo rows 192h + 24w .. +23, columns 128c .. 128c+127")
            g.I(f"""
            v_lshlrev_b32 {vML}, 7, v{T[1]}
            s_mul_i32 s34, {sH}, 192
            s_mul_i32 s35, {sW}, 24
            s_add_u32 s34, s34, s35
            s_mul_i32 s34, s34, 1280
            s_lshl_b32 s35, {sC}, 8
            s_add_u32 s34, s34, s35
            {"" if "sp" in opt else f"v_mul_u32_u24 {vW}, 3840, v{T[1]}"}
            {"" if "sp" in opt else f"v_add3_u32 {vW}, {vW}, {vU16}, s34"}
            s_lshl3_add_u32 {sRED}, {sC}, {sW}
            s_mov_b32 s22, -1
            s_mov_b32 s23, 0
            """)
            if "sp" in opt:
                g.C("""load 2p+s reads rows 24w + 3(4s+g) + p, g = lane>>4, 256 bytes each; a pair of loads is the B operand of one 2:4-sparse
                MFMA whose A fragment holds the single value z[3*a8+p] at logical k = 8*a8 + u""")
                g.I(f"""
                s_movk_i32 s68, 15360
                v_bfe_u32 v{T[0]}, v0, 4, 2
                v_mul_u32_u24 {vW}, 3840, v{T[0]}
                v_and_b32 v{T[0]}, 15, v0
                v_lshl_add_u32 {vW}, v{T[0]}, 4, {vW}
                v_add_u32 {vW}, s34, {vW}
                v_bfe_u32 v{T[2]}, v0, 3, 1
                v_lshl_add_u32 {vWR1}, v{T[2]}, 8, {vWR1}
                v_and_b32 v{T[2]}, 3, v0
                v_cmp_eq_u32 vcc, 3, v{T[2]}
                v_mov_b32 v{T[3]}, 0xffff
                v_mov_b32 v{T[4]}, 0xffff0000
                v_cndmask_b32 v{T[3]}, v{T[3]}, v{T[4]}, vcc
                v_cndmask_b32 v{T[2]}, v{T[2]}, 0, vcc
                v_or_b32 v{T[2]}, 12, v{T[2]}
                v_mul_u32_u24 v{SPI}, 0x1111, v{T[2]}
                v_bfe_u32 v{T[0]}, v0, 2, 2
                """)
                for w in range(4):
                    g.I(f"v_cmp_eq_u32 vcc, {w}, v{T[0]}"); g.I(f"v_mov_b32 v{SPD+w}, 0"); g.I(f"v_cndmask_b32 v{SPM+w}, 0, v{T[3]}, vcc")
        else:
            g.C("w2 rows 64l + 8w + a8, columns from 0 / 192 / 384 / 512 (192,192,128,128 wide) by rho")
            g.I(f"""
            s_mul_i32 {sRED}, {sRHO}, 12
            s_min_u32 {sRED}, {sRED}, 32
            s_lshl_b32 s34, {sL}, 6
            s_lshl_b32 s35, {sW}, 3
            s_add_u32 s34, s34, s35
            s_mul_i32 s34, s34, 1280
            s_lshl_b32 s35, {sRED}, 5
            s_add_u32 s34, s34, s35
            v_mul_u32_u24 {vW}, 1280, v{T[1]}
            v_add3_u32 {vW}, {vW}, {vU16}, s34
            s_cmp_ge_u32 {sRHO}, 2
            s_cselect_b32 s34, {OOB}, 0
            s_cselect_b32 s23, 0, -1
            v_add_u32 v{AB3[1]}, s34, {vW}
            s_cmp_ge_u32 {sW}, 4
            s_cselect_b32 s23, 0, s23
            s_mov_b32 s22, -1
            s_add_u32 {sRED}, {sRED}, {sW}
            """)
        g.I(f"s_lshl_b32 {sFP}, {sRED}, {AS+2}\ns_add_u32 {sFP}, {sFP}, {FS}\ns_lshl_b32 {sRED}, {sRED}, 5\ns_add_u32 s5, {sTAG}, 16")
    def consume_ml():
        g.C("softmax weight of each of the 8 partial o's: exp2(m_c - M) / L; the gate g rides in an F granule")
        g.poll_check("mlpoll", sMLQ, voff=vML)
        if "rearly" in opt:
            g.C("all 8 workgroups of this head hold the tag now: count heads in d_debug[0]")
            g.I(f"s_or_b32 s34, {sC}, {sW}\ns_cbranch_scc1 L_A_nocount\ns_mov_b32 s12, 1\ns_atomic_add s12, s[10:11], 0 glc\nL_A_nocount:")
        g.I(f"v_mov_b32 v{T[0]}, v{P}")
        g.I(f"v_readlane_b32 {sG}, v{P+2}, 40")
        g.red_up([T[0]], [T[1]], op="max")
        g.I(f"""
        v_readfirstlane_b32 s34, v{T[0]}
        v_subrev_f32 {vF}, s34, v{P}
        v_exp_f32 {vF}, {vF}
        v_mul_f32 v{T[0]}, {vF}, v{P+1}
        """)
        g.red_up([T[0]], [T[1]])
        g.I(f"v_rcp_f32 v{T[0]}, v{T[0]}\nv_readfirstlane_b32 s34, v{T[0]}\nv_mul_f32 {vF}, s34, {vF}")
        if "gfold" in opt: g.I(f"v_mul_f32 {vF}, {sG}, {vF}")
        if "tpoll" in opt: g.I(f"ds_bpermute_b32 {vF}, {vBP}, {vF}\nds_bpermute_b32 v154, {vBP}, {vPOLL}\ns_waitcnt lgkmcnt(0)")
    def consume_h():
        g.C("h = silu(gate) * up from the four row-quarter partials")
        g.poll_check("hpoll", sP2, mask=0xffffffff)
        g.transpose_sum(2)
        g.I(f"""
        v_cvt_pk_bf16_f32 v{T[0]}, v{T[0]}, v{T[1]}
        v_and_b32 v{T[1]}, 0xffff0000, v{T[0]}
        v_lshlrev_b32 v{T[0]}, 16, v{T[0]}
        v_mul_f32 v{T[2]}, {f32(-LOG2E)}, v{T[0]}
        v_exp_f32 v{T[2]}, v{T[2]}
        v_add_f32 v{T[2]}, 1.0, v{T[2]}
        v_rcp_f32 v{T[2]}, v{T[2]}
        v_mul_f32 v{T[0]}, v{T[0]}, v{T[2]}
        v_cvt_pk_bf16_f32 v{T[0]}, v{T[0]}, v{T[0]}
        v_lshlrev_b32 v{T[0]}, 16, v{T[0]}
        v_mul_f32 v{T[0]}, v{T[0]}, v{T[1]}
        v_cvt_pk_bf16_f32 v{T[0]}, v{T[0]}, v{T[0]}
        """)
        g.build_a(AB3[0], T[0])
    def g_issue():
        g.C("gate operands (in range for wave 0 only)")
        g.vmem("gx4", f"buffer_load_dwordx4 {r4(XX)}, {vL16}, {X_}, 0 offen")
        g.vmem("gx1", f"buffer_load_dword v{XX+4}, {vL4}, {X_}, 0 offen offset:1024")
        g.vmem("gg4", f"buffer_load_dwordx4 {r4(GG)}, {vL16}, {G_}, 0 offen")
        g.vmem("gg1", f"buffer_load_dword v{GG+4}, {vL4}, {G_}, 0 offen offset:1024")
    def g_compute():
        g.C("g = sigmoid(sum(x * gate_w)) -> LDS")
        g.I(f"s_cmp_lg_u32 {sW}, 0"); g.I("s_cbranch_scc1 L_F_nog")
        g.I(f"v_mov_b32 {vG}, 0")
        for k in range(5):
            g.I(f"""
            v_lshlrev_b32 v{T[1]}, 16, v{XX+k}
            v_lshlrev_b32 v{T[2]}, 16, v{GG+k}
            v_and_b32 v{XX+k}, 0xffff0000, v{XX+k}
            v_and_b32 v{GG+k}, 0xffff0000, v{GG+k}
            v_mul_f32 v{T[1]}, v{T[1]}, v{T[2]}
            v_mul_f32 v{T[2]}, v{XX+k}, v{GG+k}
            v_cvt_pk_bf16_f32 v{T[1]}, v{T[1]}, v{T[2]}
            v_lshlrev_b32 v{T[2]}, 16, v{T[1]}
            v_and_b32 v{T[1]}, 0xffff0000, v{T[1]}
            v_add_f32 {vG}, {vG}, v{T[2]}
            v_add_f32 {vG}, {vG}, v{T[1]}
            """)
        gi = int(vG[1:])
        g.red_low([gi]); g.red_up([gi], [T[1]])
        g.I(f"""
        v_cvt_pk_bf16_f32 {vG}, {vG}, {vG}
        v_lshlrev_b32 {vG}, 16, {vG}
        v_mul_f32 {vG}, {f32(-LOG2E)}, {vG}
        v_exp_f32 {vG}, {vG}
        v_add_f32 {vG}, 1.0, {vG}
        v_rcp_f32 {vG}, {vG}
        v_cvt_pk_bf16_f32 {vG}, {vG}, {vG}
        v_lshlrev_b32 {vG}, 16, {vG}
        s_mov_b64 exec, 1
        ds_write_b32 {vL4}, {vG} offset:{GL}
        s_mov_b64 exec, -1
        L_F_nog:
        """)
    def v_mfma(j):
        t, l = divmod(j, 3)
        g.I(f"{MF} {r4(D[l])}, {r4(AB[t%2])}, {r4(VR[j])}, {r4(D[l]) if t else 0}")
        if l == 0 and t < 7: g.build_a(AB[(t+1)%2], S[t+1])
    def work():
        while st["aj"] < nA and landed(f"A{st['aj']}"):
            a_mfma(st["aj"]); st["aj"] += 1
        if st["aj"] == nA and not st["pub1"]: pub1(); st["pub1"] = True
        if not st["g"] and not st["gi"] and f"K{val('gp', 7)}" in issued: g_issue(); st["gi"] = True
        elif st["gi"] and not st["g"] and gone("gg1"): g_compute(); st["g"] = True
        if not st["qi"] and f"K{val('qp', 17)}" in issued:
            assert st["g"]
            g.poll_issue("qpoll", sQP, mask=0xffffffffff); st["qi"] = True
        elif st["qi"] and not st["q"] and gone("qpoll"): consume_q(); st["q"] = True
        elif st["q"] and st["kt"] < 8:
            ts = [t for t in range(st["kt"], min(st["kt"]+2, 8)) if landed(f"K{3*t+2}")]
            if "k1" in opt and st.get("kpos") == pos[0]: ts = []
            if ts: k_octets(ts); st["kt"] = ts[-1] + 1; st["kpos"] = pos[0]
        if not A and val("init", 0) and not st.get("ini") and seq[nA + val("init", 0)] in issued: acc_init(); st["ini"] = True
        if st["kt"] == 8 and not st["sm"]:
            if "sm2" not in opt or pos[0] > st["kpos"]: softmax(); st["sm"] = True; st["smpos"] = pos[0]
        elif st["sm"] and not st["addr"]:
            if "addr2" not in opt or pos[0] > st["smpos"]: tail_addr(); st["addr"] = True
        elif st["addr"] and not st["h"] and not st["hi"]:
            if "halias" in opt: g.I(f"v_bfe_u32 {vPOLL}, v0, 3, 3\nv_lshl_add_u32 {vPOLL}, {vPOLL}, 13, {vU16}")
            g.poll_issue("hpoll", sP2, mask=0xffffffff); st["hi"] = True
        elif st["hi"] and not st["h"] and gone("hpoll"): consume_h(); st["h"] = True
        if st["addr"] and not st["mli"] and f"V{val('mlp', 14)}" in issued: g.poll_issue("mlpoll", sMLQ, voff=vML); st["mli"] = True
        elif st["mli"] and not st["ml"] and gone("mlpoll"): consume_ml(); st["ml"] = True
        if st["sm"]:
            while st["vj"] < 24 and landed(f"V{st['vj']}"): v_mfma(st["vj"]); st["vj"] += 1
    starts = {}
    if "a4v" in opt and A: starts = {"V12": False, "V13": True, "V15": False, "V17": True, "V18": False}
    if "a4k" in opt and A: starts = {"K6": False, "K7": True, "K9": False, "K11": True, "K12": False}
    if "fk" in opt and not A: starts = {"K0": False, "K1": True}
    if A and fast: work()
    while st["vj"] < 24:
        g.cap(0); issue()
        while pos[0] < len(seq) and not starts.get(seq[pos[0]], int(seq[pos[0]][1:]) % 3 == 0): issue()
        work(); work()
    assert st["ml"] and st["h"] and st["g"]
    g.C("publish this workgroup's partial o with tag + 16 (L2-resident when every reader shares this L2, else write-through);\nan A slot reuses its q slot: all 8 workgroups of the head consumed q before they published {max, sum}")
    for _ in range(val("wpre", 0)):
        if pos[0] < len(seq): issue()
    g.lds_put(vWR0, list(enumerate(D)))
    for _ in range(val("wmid", 0)):
        if pos[0] < len(seq): issue()
    g.I("s_waitcnt lgkmcnt(0)"); g.I("s_barrier")
    for _ in range(val("wbar", 0)):
        if pos[0] < len(seq): issue()
    g.red192(f"v_mov_b32 v{P+3}, s5\ns_cmp_lg_u32 {sLOC}, 0")
    g.exec_(0xff)
    g.loc_store("pubo", f"buffer_store_dwordx4 {r4(P)}, {vU16}, {WS_}, {sOP} offen")
    g.exec_(-1)
    early = A and "early" in opt
    if early: g.vmem("op0", f"buffer_load_dwordx4 {r4(PO)}, {vPOLL}, {WS_}, {sP2} offen sc1")
    while pos[0] < len(seq): issue()
    X, Y = AB3[0], AB3[1]
    if A and "rearly" in opt:
        g.I("s_and_b32 s12, s12, 31\ns_cmp_eq_u32 s12, 31\ns_cbranch_scc1 L_A_retire\nL_A_retired:")
        g.cold += ["L_A_retire:", "  ; last head counted: every workgroup has read ws[0], retire this launch's tag",
                   "  s_mov_b64 exec, 1", f"  v_mov_b32 v{T[4]}, {sTAG}", f"  buffer_store_dword v{T[4]}, {vU16}, {WS_}, 0 offen {'' if 'rep' in opt else 'sc1'}", "  s_mov_b64 exec, -1", "  s_branch L_A_retired"]
    if A:
        g.C("gather the 8 partial o's of rows 24w .. 24w+23, weight, sum, multiply with wo")
        tp = "tpoll" in opt
        if early:
            g.wait("op0"); keep = list(g.vm)
            g.I(f"v_cmp_ne_u32 vcc, s5, v{PO+3}")
            for t in range(3): g.I(f"v_mul_f32 v{PO+t}, v{PO+t}, {vF}")
            g.I("s_cbranch_vccz L_A_ook")
        if val("opw", 3) >= 0: g.wait(f"W{val('opw', 3)}")
        g.I("L_A_opoll:")
        g.I(f"buffer_load_dwordx4 {r4(PO)}, {'v154' if tp else vPOLL}, {WS_}, {sP2} offen sc1")
        g.I(f"s_add_u32 {sSPIN}, {sSPIN}, 1\ns_cmp_gt_u32 {sSPIN}, {SPINMAX}\ns_cbranch_scc1 L_A_exit")
        g.I("s_waitcnt vmcnt(0)"); g.vm = []
        g.I(f"v_cmp_ne_u32 vcc, s5, v{PO+3}")
        for t in range(3): g.I(f"v_mul_f32 v{T[t] if tp else PO+t}, v{PO+t}, {vF}")
        g.I("s_cbranch_vccnz L_A_opoll")
        if early: g.I("L_A_ook:"); g.vm = keep
        if tp: g.red_low(T[0:3])
        else: g.transpose_sum(3, src=PO)
        for t in range(3): g.I(f"v_cvt_pk_bf16_f32 v{T[t]}, v{T[t]}, v{T[t]}")
        if "sp" in opt:
            ba = lambda p: [g.I(f"v_and_b32 v{AB3[p]+w}, v{T[p]}, v{SPM+w}") for w in range(4)]
            sm = lambda p: g.I(f"v_smfmac_f32_16x16x64_bf16 {r4(SPD)}, {r4(AB3[p])}, v[{WR[2*p]}:{WR[2*p]+7}], v{SPI}")
            ba(0); ba(1); sm(0); ba(2); sm(1); sm(2)
            g.I("s_nop 7")
            g.I(f"ds_write_b128 {vWR1}, {r4(SPD)}")
        else:
            g.build_a(AB3[0], T[0]); g.build_a(AB3[1], T[1])
            for l in range(2): g.I(f"{MF} {r4(D[l])}, {r4(AB3[0])}, {r4(WR[l])}, 0")
            g.build_a(AB3[2], T[2])
            for t in range(1, 3):
                for l in range(2):
                    g.wait(f"W{2*t+l}")
                    g.I(f"{MF} {r4(D[l])}, {r4(AB3[t])}, {r4(WR[2*t+l])}, {r4(D[l])}")
            g.lds_put(vWR1, [(0, D[0]), (1, D[1])])
        g.I("s_waitcnt lgkmcnt(0)"); g.I("s_barrier")
        g.I(f"""
        ds_read2st64_b32 {r2(X)}, {vRD1} offset0:0 offset1:2
        ds_read2st64_b32 {r2(X+2)}, {vRD1} offset0:4 offset1:6
        s_waitcnt lgkmcnt(1)
        v_add_f32 v{X}, v{X}, v{X+1}
        s_waitcnt lgkmcnt(0)
        v_add_f32 v{X+2}, v{X+2}, v{X+3}
        v_add_f32 v{X}, v{X}, v{X+2}
        v_permlane32_swap_b32 v{X}, v{X+1}
        v_add_f32 v{X}, v{X}, v{X+1}
        v_add_f32_dpp v{X}, v{X}, v{X} quad_perm:[1,0,3,2] {DPPM}
        s_mov_b64 exec, 0x55555555
        {"" if "gfold" in opt else f"v_mul_f32 v{X}, {sG}, v{X}"}
        """)
    else:
        g.C("h @ w2 on this slice")
        for l in range(3):
            g.wait(f"W{l}")
            g.I(f"{MF} {r4(D[l])}, {r4(AB3[0])}, {r4(WR[l])}, 0")
        g.lds_put(vWR1, list(enumerate(D)))
        g.I("s_waitcnt lgkmcnt(0)"); g.I("s_barrier")
        g.I(f"""
        ds_read2st64_b32 {r2(X)}, {vRD1} offset0:0 offset1:3
        ds_read2st64_b32 {r2(X+2)}, {vRD1} offset0:6 offset1:9
        ds_read2st64_b32 {r2(Y)}, {vRD1} offset0:2 offset1:5
        ds_read2st64_b32 {r2(Y+2)}, {vRD1} offset0:8 offset1:11
        s_waitcnt lgkmcnt(0)
        """)
        for b in (X, Y): g.I(f"v_add_f32 v{b}, v{b}, v{b+1}"); g.I(f"v_add_f32 v{b+2}, v{b+2}, v{b+3}")
        for b in (X, Y): g.I(f"v_add_f32 v{b}, v{b}, v{b+2}")
        g.I(f"""
        v_permlane32_swap_b32 v{X}, v{Y}
        v_add_f32 v{X}, v{X}, v{Y}
        v_add_f32_dpp v{X}, v{X}, v{X} quad_perm:[1,0,3,2] {DPPM}
        s_mov_b32 exec_lo, 0x55555555
        s_mov_b32 exec_hi, 0x55555555
        v_mul_f32 v{X}, v{X}, {vF}
        """)
    g.C(f"""final reduction: one returning f64 add per 16-byte cell; even lanes add the gated partial, odd lanes add 1.0 to
    the cell's arrival counter.  The wave whose add is the last of the {NADD} owns the total and writes that output element.""")
    g.I(f"""
    v_cvt_f64_f32 {r2(OLD)}, v{X}
    s_mov_b64 exec, {sAM}
    L_{role}_acc:
    buffer_atomic_add_f64 {r2(OLD)}, {vACC}, {WS_}, {sFP} offen sc0 sc1
    v_cvt_f64_f32 {r2(OWN)}, v{X}
    s_mov_b32 s4, 0xaaaaaaaa
    s_mov_b32 s5, 0xaaaaaaaa
    s_add_u32 {sSPIN}, {sSPIN}, 1
    s_waitcnt vmcnt(0)
    v_add_f64 {r2(T[0])}, {r2(OLD)}, {r2(OWN)}
    v_subrev_u32 v{T[2]}, {sLO}, v{OLD}
    v_cmp_ne_u32 s[18:19], {sHI}, v{OLD+1}
    v_cvt_f32_f64 v{T[0]}, {r2(T[0])}
    v_cmp_lt_u32 s[14:15], {NADD-1}, v{T[2]}
    v_cmp_eq_u32 vcc, {NADD-1}, v{T[2]}
    v_cvt_pk_bf16_f32 v{T[0]}, v{T[0]}, v{T[0]}
    s_andn2_b64 vcc, vcc, s[18:19]
    s_and_b64 vcc, vcc, s[4:5]
    s_lshr_b64 exec, vcc, 1
    s_cbranch_execz L_{role}_notlast
    buffer_store_short v{T[0]}, {vOUT}, {O_}, {sRED} offen
    """)
    if "rearly" not in opt:
        g.I(f"s_cmp_lg_u32 {sRED}, 0\ns_cbranch_scc1 L_{role}_notlast\ns_and_b64 exec, exec, 1\ns_cbranch_execz L_{role}_notlast")
        g.C("every workgroup has read ws[0] by now: retire this launch's tag")
        g.I(f"v_mov_b32 v{T[1]}, {sTAG}\nbuffer_store_dword v{T[1]}, {vOUT}, {WS_}, 0 offen {'' if 'rplain' in opt else 'sc1'}")
    g.I(f"""
    L_{role}_notlast:
    s_or_b64 s[18:19], s[18:19], s[14:15]
    s_and_b64 s[18:19], s[18:19], s[4:5]
    s_cbranch_scc1 L_{role}_again
    s_endpgm
    """)
    g.cold += [f"L_{role}_again:", "  ; a cell was not reset yet: the add is void (the reset overwrites it), so repeat it",
               "  s_mov_b64 exec, s[18:19]", f"  v_mov_b32 v{OLD}, 0", f"  v_mov_b32 v{OLD+1}, 0x3ff00000",
               "  s_lshr_b64 exec, s[18:19], 1", f"  v_cvt_f64_f32 {r2(OLD)}, v{X}", "  s_or_b64 exec, exec, s[18:19]",
               f"  s_cmp_gt_u32 {sSPIN}, {SPINMAX}", f"  s_cbranch_scc0 L_{role}_acc"]
    return g.L + ["  ; ---- rarely taken paths"] + g.cold + [f"L_{role}_exit:", "  s_endpgm"]

DOC = f"""; One launch, 256 workgroups (one per CU) x 8 waves; workgroup = (head h, slice c), every byte is read once (nt).
"""
def gen(path, scramble=0, fast=False, opt=()):
    e = G("E")
    if scramble:
        e.I("s_cmp_ge_u32 s2, 256"); e.I("s_cbranch_scc1 L_F_exit")
        if scramble == 1: e.I("s_lshr_b32 s3, s2, 3\ns_and_b32 s2, s2, 7\ns_lshl_b32 s2, s2, 5\ns_or_b32 s2, s2, s3")
        elif scramble == 2: e.I("s_cmp_ge_u32 s2, 160\ns_cselect_b32 s3, 1, 0\ns_xor_b32 s2, s2, s3")
        elif scramble == 3: e.I("s_bfe_u32 s3, s2, 0x20003\ns_cmp_eq_u32 s3, 3\ns_cselect_b32 s3, 1, 0\ns_xor_b32 s2, s2, s3")
        elif scramble == 4: e.I("s_mul_i32 s2, s2, 37\ns_lshr_b32 s3, s2, 4\ns_and_b32 s3, s3, 7\ns_and_b32 s2, s2, 255\ns_xor_b32 s2, s2, s3")
    ptr(e, A_, 24); ptr(e, X_, 0)
    e.I("s_load_dwordx4 s[16:19], s[0:1], 48")
    if not fast: ptr(e, K_, 8); ptr(e, WS_, 96)
    e.I("s_cmpk_ge_u32 s2, 160\ns_cbranch_scc1 L_F")
    pa, pf = program("A", fast, opt), program("F", fast, opt)
    if "fnear" in opt:
        ia = [k for k, l in enumerate(pa) if l.strip() == "@SPLIT"][0]; jf = [k for k, l in enumerate(pf) if l.strip() == "@SPLIT"][0]
        L = fix_hazards(e.L + pa[:ia]) + fix_hazards(pf[:jf]) + fix_hazards(pa[ia+1:]) + fix_hazards(pf[jf+1:])
    else: L = fix_hazards(e.L + pa) + fix_hazards(pf)
    txt = HDR + f"; @launch grid=(256,1,1) block=(512,1,1) lds={LDS_BYTES}\n" + DOC
    txt += '.amdgcn_target "amdgcn-amd-amdhsa--gfx950"\n.text\n' + f".globl {KN}_kernel\n.p2align 8\n.type {KN}_kernel,@function\n{KN}_kernel:\n"
    txt += "\n".join(L) + "\n"
    txt += f""".section .rodata,"a"
.p2align 6
.amdhsa_kernel {KN}_kernel
  .amdhsa_next_free_vgpr 256
  .amdhsa_next_free_sgpr 96
  .amdhsa_accum_offset 256
  .amdhsa_group_segment_fixed_size 0
  .amdhsa_kernarg_size 104
  .amdhsa_user_sgpr_count 2
  .amdhsa_user_sgpr_kernarg_segment_ptr 1
  .amdhsa_system_sgpr_workgroup_id_x 1
.end_amdhsa_kernel
"""
    open(path, "w").write(txt)
FINAL = dict(fast=True, opt=("mlfull", "alias", "wpre1", "opw4", "sp", "rearly", "addr2", "qp14", "gp4"))
if __name__ == "__main__":
    gen("final.s", **FINAL)
    for k in (1, 2, 3, 4): gen(f"final_sc{k}.s", scramble=k, **FINAL)
```

```python
import sys, math, struct
from asmlib import Prog, fix_hazards
KN = "gated_mix__sliding_block_cached__glu_gated_swiglu__decode"
HDR = open("cdna_kernels/" + KN + ".s.ref").read().split("; Override launch")[0]
def f32(x): return "0x%08x" % struct.unpack("<I", struct.pack("<f", x))[0]
LOG2E = 1.4426950408889634
CS = LOG2E

QS, HS, ML, OS, FS = 0x1000, 0x50000, 0x70000, 0x80000, 0xC0000
WS_BYTES = 0x400000
OOB = 0x1000000
R0, R1, R2 = 0, 12544, 12544 + 8704
QL = R2 + 12800; MLL = QL + 384; GL = MLL + 64; SAV = GL + 64; LDS_BYTES = SAV + 1024
sH, sC, sW, sTAG = "s30", "s31", "s32", "s33"
K_, V_, A_, W_, X_, WS_, O_, G_ = "s[36:39]", "s[40:43]", "s[44:47]", "s[48:51]", "s[52:55]", "s[56:59]", "s[60:63]", "s[64:67]"
sPUB1, sQP, sMLP, sMLQ, sOP, sP2, sFP, sRED, sSPIN, sCS, sRHO, sL = ["s%d" % i for i in range(71, 83)]
sXCC, sLOC, sFL, sXM, sAM = "s8", "s3", "s17", "s[20:21]", "s[22:23]"
sG, sHI, sLO = "s9", "s6", "s7"
KSO = ["s70", "s24", "s25", "s26", "s27", "s28", "s29", "s16"]
vKV, vA, vX = "v1", "v2", "v3"
M = [4, 5, 6, 7]; AB = [8, 12]; D = [16, 20, 24]; Q = [28, 32, 36]; S = list(range(40, 48)); P = 48
vWR0, vRD0, vU16, vPOLL, vBP, vF = "v52", "v53", "v54", "v55", "v56", "v57"
T = list(range(58, 64))
KR = [64 + 4*i for i in range(24)]; VR = [160 + 4*i for i in range(24)]
AR = VR[18:24]; WR = KR[0:6]
vW, vWR1, vRD1, vML = "v88", "v89", "v90", "v91"
AB3 = [92, 96, 100]; PO = 104
XX, GG = 208, 216
vG, vL4, vL16 = "v224", "v225", "v226"
vACC, vOUT = "v148", "v149"; OWN, OLD = 150, 152
SPM, SPD, SPI = 112, 116, 120
NADD = 56; SPINMAX = 0x800000; SHIFT = 53
def r4(b): return f"v[{b}:{b+3}]"
def r2(b): return f"v[{b}:{b+1}]"
DPPM = "row_mask:0xf bank_mask:0xf"
MF = "v_mfma_f32_16x16x32_bf16"

class G(Prog):
    def __init__(self, role):
        super().__init__(); self.role = role; self.cold = []; self.bigonly = True
    def C(self, s):
        for l in s.strip("\n").split("\n"): self.L.append("  ; " + l.strip())
    def exec_(self, m):
        if isinstance(m, str): self.I(f"s_mov_b64 exec, {m}")
        elif m == -1: self.I("s_mov_b64 exec, -1")
        elif m < 2**31: self.I(f"s_mov_b64 exec, {hex(m)}")
        elif m & 0xffffffff == 0xffffffff: self.I(f"s_mov_b32 exec_hi, {hex(m >> 32)}")
        else: self.I(f"s_mov_b32 exec_lo, {hex(m & 0xffffffff)}"); self.I(f"s_mov_b32 exec_hi, {hex(m >> 32)}")
    def red_low(self, regs, op="add"):
        for pat in ("quad_perm:[1,0,3,2]", "quad_perm:[2,3,0,1]", "row_half_mirror"):
            for r in regs: self.I(f"v_{op}_f32_dpp v{r}, v{r}, v{r} {pat} {DPPM}")
    def red_up(self, regs, tmps, op="add", do32=True):
        if do32:
            for r, t in zip(regs, tmps): self.I(f"v_permlane32_swap_b32 v{r}, v{t}")
            for r, t in zip(regs, tmps): self.I(f"v_{op}_f32 v{r}, v{r}, v{t}")
        for r, t in zip(regs, tmps): self.I(f"v_permlane16_swap_b32 v{r}, v{t}")
        for r, t in zip(regs, tmps): self.I(f"v_{op}_f32 v{r}, v{r}, v{t}")
        for r in regs: self.I(f"v_{op}_f32_dpp v{r}, v{r}, v{r} row_ror:8 {DPPM}")
    def build_a(self, dst, src):
        for w in range(4): self.I(f"v_and_b32 v{dst+w}, v{src}, v{M[w]}")
    def poll_issue(self, name, soff, mask=-1, voff=vPOLL):
        if mask != -1:
            for t in range(3): self.I(f"v_mov_b32 v{P+t}, 0")
            self.exec_(mask)
        self.vmem(name, f"buffer_load_dwordx4 {r4(P)}, {voff}, {WS_}, {soff} offen sc1")
        if mask != -1: self.exec_(-1)
    def republish(self, lab):
        return ["  ; repeat this wave's first hand-off write-through (once) for readers behind another L2",
                f"  s_cmp_lg_u32 {sFL}, 0", f"  s_cbranch_scc1 {lab}_np", f"  s_mov_b32 {sFL}, 1",
                "  s_mov_b64 s[18:19], exec", "  s_mov_b64 exec, 0xff",
                f"  s_lshl_b32 s34, {sW}, 7", f"  v_add_u32 v{T[4]}, s34, {vU16}",
                f"  ds_read_b128 {r4(T[0])}, v{T[4]} offset:{SAV}", "  s_waitcnt lgkmcnt(0)",
                f"  buffer_store_dwordx4 {r4(T[0])}, {vU16}, {WS_}, {sPUB1} offen sc1",
                "  s_waitcnt vmcnt(0)", "  s_mov_b64 exec, s[18:19]", f"{lab}_np:"]
    def poll_check(self, name, soff, mask=-1, voff=vPOLL):
        lab = f"L_{self.role}_{name}"
        assert name not in self.vm
        if mask != -1: self.exec_(mask)
        self.I(f"{lab}_chk:")
        if name in ("qpoll", "hpoll"):
            self.I(f"v_subrev_u32 v{T[0]}, {sTAG}, v{P+3}")
            self.I(f"v_cmp_lt_u32 vcc, 15, v{T[0]}")
            self.I(f"s_cbranch_vccnz {lab}_retry")
            self.I(f"v_cmp_ne_u32 vcc, {sXCC}, v{T[0]}")
            if name == "qpoll": self.I(f"s_mov_b32 {sLOC}, 1")
            self.I(f"s_cbranch_vccnz {lab}_remote")
            self.I(f"{lab}_back:")
            self.cold += [f"{lab}_remote:"] + self.republish(lab + "_rm") + ([f"  s_mov_b32 {sLOC}, 0"] if name == "qpoll" else []) + [f"  s_branch {lab}_back"]
        else:
            self.I(f"v_cmp_ne_u32 vcc, {sTAG}, v{P+3}")
            self.I(f"s_cbranch_vccnz {lab}_retry")
        if mask != -1: self.exec_(-1)
        self.cold += [f"{lab}_retry:"] + self.republish(lab + "_rt") + [
              f"  buffer_load_dwordx4 {r4(P)}, {voff}, {WS_}, {soff} offen sc1",
              f"  s_add_u32 {sSPIN}, {sSPIN}, 1", f"  s_cmp_gt_u32 {sSPIN}, {SPINMAX}", f"  s_cbranch_scc1 L_{self.role}_exit",
              "  s_waitcnt vmcnt(0)", f"  s_branch {lab}_chk"]
    def lds_put(self, addr, accs):
        self.exec_(sXM)
        for l, d in accs: self.I(f"ds_write_b128 {addr}, {r4(d)} offset:{l*256}")
        self.exec_(-1)
    def loc_store(self, name, txt):
        lab = f"L_{self.role}_{name}"
        self.I(f"s_cbranch_scc0 {lab}_far")
        self.vmem(name, txt)
        self.I(f"{lab}_done:")
        self.cold += [f"{lab}_far:", f"  {txt} sc1", f"  s_branch {lab}_done"]
    def first_handoff(self, claim=False):
        self.exec_(0xff)
        self.vmem("pub1", f"buffer_store_dwordx4 {r4(P)}, {vU16}, {WS_}, {sPUB1} offen")
        if claim:
            self.C("same bytes into this wave's o slot (wrong tag for o): later polls of it hit in L2")
            self.vmem("claim", f"buffer_store_dwordx4 {r4(P)}, {vU16}, {WS_}, {sOP} offen")
        self.I(f"s_lshl_b32 s34, {sW}, 7"); self.I(f"v_add_u32 v{T[4]}, s34, {vU16}")
        self.I(f"ds_write_b128 v{T[4]}, {r4(P)} offset:{SAV}")
        self.exec_(-1)
    def red192(self, pre):
        for t in range(3): self.I(f"ds_read2_b32 {r2(T[0]+2*t)}, {vRD0} offset0:{t} offset1:{192+t}")
        self.I(pre)
        for t in range(3):
            self.I(f"s_waitcnt lgkmcnt({2-t})")
            self.I(f"v_add_f32 v{P+t}, v{T[0]+2*t}, v{T[0]+2*t+1}")
        self.red_up([P, P+1, P+2], T[0:3])
    def transpose_sum(self, n, src=P):
        for t in range(n): self.I(f"ds_bpermute_b32 v{T[t]}, {vBP}, v{src+t}")
        self.I("s_waitcnt lgkmcnt(0)")
        self.red_low(T[0:n])

def srd(g, name, nbytes):
    b = int(name[2:name.index(":")])
    g.I(f"s_mov_b32 s{b+2}, {nbytes}"); g.I(f"s_mov_b32 s{b+3}, 0x20000")
def ptr(g, name, off):
    b = int(name[2:name.index(":")])
    g.I(f"s_load_dwordx2 s[{b}:{b+1}], s[0:1], {off}")

def program(role, fast=False, opt=()):
    g = G(role); A = role == "A"
    val = lambda k, d: next((int(o[len(k):]) for o in opt if o.startswith(k) and o[len(k):].lstrip("-").isdigit()), d)
    AS = val("as", 8)
    g.I(f"L_{role}:")
    if not A: g.I("s_cmp_ge_u32 s2, 256"); g.I("s_cbranch_scc1 L_F_exit")
    g.C("h = 4*(wg&7) + ((wg>>3)&3), c = wg>>5, w = wave, a8 = lane>>3, u = lane&7")
    if A and fast:
        g.C("wq rows 128c + 16w + 2*a8 + t (t = 0,1), columns 192h .. 192h+191; first loads leave from the first 128 code bytes")
        g.I(f"""
        s_and_b32 s34, s2, 7
        s_bfe_u32 {sRHO}, s2, 0x20003
        s_lshl2_add_u32 {sH}, s34, {sRHO}
        s_lshr_b32 {sC}, s2, 5
        s_lshl_b32 s34, {sC}, 12
        s_add_u32 s34, s34, {sH}
        v_lshrrev_b32 v{T[2]}, 3, v0
        v_and_b32 {vU16}, 7, v0
        v_lshl_add_u32 {vA}, v{T[2]}, 6, s34
        v_lshlrev_b32 {vU16}, 4, {vU16}
        s_movk_i32 s34, 384
        v_mad_u32_u24 {vA}, {vA}, s34, {vU16}
        s_waitcnt lgkmcnt(0)
        """)
        for l in range(3): g.vmem(f"A{l}", f"global_load_dwordx4 {r4(AR[l])}, {vA}, s[44:45] offset:{l*128} nt")
        if "fnear" in opt: g.I("s_branch L_A2\n@SPLIT\nL_A2:")
        g.I(f"s_lshl_b32 s35, {sC}, 8\nv_lshl_add_u32 {vX}, v{T[2]}, 2, s35")
        g.vmem("x", f"global_load_dword v{P}, {vX}, s[52:53]")
        ptr(g, WS_, 96); ptr(g, K_, 8)
        g.I(f"v_lshrrev_b32 v{T[0]}, 6, v0\nv_bfe_u32 v{T[1]}, v0, 3, 3\nv_readfirstlane_b32 {sW}, v{T[0]}\ns_movk_i32 s9, 12288")
        srd(g, A_, 640*12288)
    fnear = "fnear" in opt and not A
    if fnear:
        g.C("the last wave visits the far part of this role's code first, so its first lines are fetched early")
        g.I("v_readfirstlane_b32 s34, v0\ns_cmpk_ge_u32 s34, 448\ns_cbranch_scc1 L_F_pad\nL_F_back:")
    elif fast and not A: ptr(g, WS_, 96); ptr(g, K_, 8)
    if not (A and fast):
        g.I(f"""
        s_and_b32 s34, s2, 7
        s_bfe_u32 {sRHO}, s2, 0x20003
        v_lshrrev_b32 v{T[0]}, 6, v0
        s_lshl2_add_u32 {sH}, s34, {sRHO}
        s_lshr_b32 {sC}, s2, 5
        v_and_b32 {vU16}, 7, v0
        v_lshlrev_b32 {vU16}, 4, {vU16}
        v_readfirstlane_b32 {sW}, v{T[0]}
        v_bfe_u32 v{T[1]}, v0, 3, 3
        """)
        srd(g, X_, 1280)
    a_loads = []
    if A:
        if not fast:
            g.C("wq rows 128c + 16w + 2*a8 + t (t = 0,1), columns 192h .. 192h+191")
            srd(g, A_, 640*12288)
            g.I(f"""
            s_mul_i32 s34, {sC}, {128*12288}
            s_mul_i32 s35, {sH}, 384
            s_add_u32 s34, s34, s35
            v_lshrrev_b32 v{T[2]}, 3, v0
            v_mul_u32_u24 {vA}, 24576, v{T[2]}
            v_add3_u32 {vA}, {vA}, {vU16}, s34
            s_lshl_b32 s35, {sC}, 8
            v_lshl_add_u32 {vX}, v{T[2]}, 2, s35
            s_movk_i32 s9, 12288
            s_waitcnt lgkmcnt(0)
            """)
            g.vmem("x", f"buffer_load_dword v{P}, {vX}, {X_}, 0 offen")
        for j in range(6):
            t, l = divmod(j, 3)
            a_loads.append(f"buffer_load_dwordx4 {r4(AR[j])}, {vA}, {A_}, {'s9' if t else '0'} offen offset:{l*128} nt")
    else:
        g.C("""hidden units 64l .. 64l+63 with l = 3*(wg&7) + c - 5; rho = h&3 picks a quarter of the 640 rows
        waves 0-3 read w1, waves 4-7 read w3: rows 160rho + 40(w&3) + 4*a8 + t (t<4) and + 32 + a8""")
        srd(g, A_, 640*3072)
        g.I(f"""
        s_movk_i32 s68, 6144
        s_mul_i32 {sL}, s34, 3
        s_add_u32 {sL}, {sL}, {sC}
        s_sub_u32 {sL}, {sL}, 5
        s_and_b32 s34, {sW}, 3
        s_mul_i32 s34, s34, 40
        s_mul_i32 s35, {sRHO}, 160
        s_add_u32 s34, s34, s35
        s_lshl_b32 s35, s34, 1
        v_lshl_add_u32 {vX}, v{T[1]}, 3, s35
        v_lshl_add_u32 v{T[3]}, v{T[1]}, 1, s35
        s_mul_i32 s34, s34, 3072
        s_lshl_b32 s35, {sL}, 7
        s_add_u32 s34, s34, s35
        v_mul_u32_u24 v{T[2]}, 3072, v{T[1]}
        v_add_u32 v{T[4]}, s34, {vU16}
        v_lshl_add_u32 {vA}, v{T[2]}, 2, v{T[4]}
        v_add_u32 v{Q[0]+2}, v{T[2]}, v{T[4]}
        s_mov_b32 s9, {32*3072}
        s_cmp_ge_u32 {sW}, 4
        s_waitcnt lgkmcnt(0)
        s_cselect_b32 s44, s18, s16
        s_cselect_b32 s45, s19, s17
        """)
        def xloads():
            g.vmem("x0", f"buffer_load_dwordx2 {r2(P)}, {vX}, {X_}, 0 offen")
            g.vmem("x", f"buffer_load_ushort v{P+2}, v{T[3]}, {X_}, 0 offen offset:64")
        if not fnear: xloads()
        for t in range(4):
            a_loads.append(f"buffer_load_dwordx4 {r4(AR[t])}, {vA}, {A_}, {'s68' if t//2 else '0'} offen offset:{(t%2)*3072} nt")
        a_loads.append(f"buffer_load_dwordx4 {r4(AR[4])}, v{Q[0]+2}, {A_}, s9 offen nt")
    nA = len(a_loads); nW = 6 if A else 3
    seq = [f"A{j}" for j in range(nA)] + [f"K{j}" for j in range(24)] + [f"V{j}" for j in range(24)] + [f"W{j}" for j in range(nW)]
    pos = [0]; issued = set()
    def issue():
        nm = seq[pos[0]]; pos[0] += 1; issued.add(nm); j = int(nm[1:])
        if nm[0] == "A": g.vmem(nm, a_loads[j])
        elif nm[0] == "W":
            if A and "sp" in opt: g.vmem(nm, f"buffer_load_dwordx4 {r4(WR[j])}, {vW}, {W_}, {'s68' if j%2 else 0} offen offset:{(j//2)*1280} nt")
            elif A: g.vmem(nm, f"buffer_load_dwordx4 {r4(WR[j])}, {vW}, {W_}, 0 offen offset:{(j//2)*1280 + (j%2)*128} nt")
            else: g.vmem(nm, f"buffer_load_dwordx4 {r4(WR[j])}, {('v%d' % AB3[1]) if j == 2 else vW}, {W_}, 0 offen offset:{j*128} nt")
        else:
            reg, sr = (KR[j], K_) if nm[0] == "K" else (VR[j], V_)
            g.vmem(nm, f"buffer_load_dwordx4 {r4(reg)}, {vKV}, {sr}, {KSO[j//3]} offen offset:{(j%3)*128} nt")
    if A and fast: pos[0] = 3; issued.update(("A0", "A1", "A2"))
    else:
        for _ in range(3): issue()
    if fnear:
        xloads()
        g.I("s_branch L_F_main\n@SPLIT\nL_F_pad:\ns_branch L_F_back\nL_F_main:")
        ptr(g, WS_, 96); ptr(g, K_, 8)
    g.C("remaining set-up runs under the first loads; ws[0] only seeds this launch's hand-off tag")
    if not (A and fast) and not fnear: g.I(f"s_load_dword {sTAG}, s[56:57], 0")
    ptr(g, V_, 16); ptr(g, W_, 32 if A else 64); ptr(g, O_, 80)
    if A and "rearly" in opt: g.I("s_load_dwordx2 s[10:11], s[0:1], 88\ns_mov_b32 s12, 0")
    if not A: ptr(g, G_, 72)
    g.I(f"""
    s_mul_i32 s34, {sH}, 12582912
    s_add_u32 s34, s34, {28672*384}
    v_mul_u32_u24 {vKV}, 384, v{T[1]}
    v_add3_u32 {vKV}, {vKV}, {vU16}, s34
    """)
    srd(g, K_, 402653184); srd(g, V_, 402653184); srd(g, WS_, WS_BYTES); srd(g, W_, 6144*1280 if A else 1536*1280); srd(g, O_, 1280)
    if not A: srd(g, G_, 1280)
    g.I(f"""
    s_mov_b32 {sSPIN}, 0
    s_mov_b32 {sFL}, 0
    s_getreg_b32 {sXCC}, hwreg(HW_REG_XCC_ID, 0, 4)
    s_mov_b32 {sCS}, {f32(CS)}
    s_mov_b32 s20, 0x00ff00ff
    s_mov_b32 s21, 0xff00ff00
    """)
    g.C("lane masks that place one bf16 coefficient at element u of an MFMA A fragment")
    g.I(f"""
    v_and_b32 v{T[0]}, 1, v0
    v_lshlrev_b32 v{T[0]}, 4, v{T[0]}
    v_mov_b32 v{T[2]}, 0xffff
    v_lshlrev_b32 v{T[2]}, v{T[0]}, v{T[2]}
    v_bfe_u32 v{T[0]}, v0, 1, 2
    """)
    for w in range(4): g.I(f"v_cmp_eq_u32 s[{22+2*w}:{23+2*w}], {w}, v{T[0]}")
    for w in range(4): g.I(f"v_cndmask_b32 v{M[w]}, 0, v{T[2]}, s[{22+2*w}:{23+2*w}]")
    g.C("LDS and hand-off slot addresses")
    g.I(f"""
    v_lshl_add_u32 {vPOLL}, v{T[1]}, 10, {vU16}
    v_lshlrev_b32 {vBP}, 1, {vU16}
    v_lshl_add_u32 {vBP}, v{T[1]}, 2, {vBP}
    v_bfe_u32 v{T[0]}, v0, 4, 1
    v_lshlrev_b32 v{T[0]}, 4, v{T[0]}
    v_lshl_add_u32 v{T[0]}, {vU16}, 1, v{T[0]}
    v_bfe_u32 v{T[2]}, v0, 5, 1
    s_mul_i32 s34, {sW}, {392*4}
    v_mul_u32_u24 {vWR0}, 768, v{T[2]}
    v_add3_u32 {vWR0}, {vWR0}, v{T[0]}, s34
    s_mul_i32 s34, {sW}, 96
    v_mul_u32_u24 {vRD0}, {392*4}, v{T[1]}
    v_and_b32 v{T[3]}, 7, v0
    v_mul_u32_u24 v{T[3]}, 12, v{T[3]}
    v_add3_u32 {vRD0}, {vRD0}, v{T[3]}, s34
    s_lshl_b32 s34, {sW}, 7
    s_lshl_b32 s35, {sH}, 13
    s_add_u32 s35, s35, s34
    s_add_u32 {sQP}, s35, {QS}
    s_add_u32 {sP2}, s35, {QS if 'alias' in opt else OS}
    s_lshl_b32 s35, {sC}, 10
    s_add_u32 {sPUB1}, {sQP}, s35
    s_add_u32 {sOP}, {sP2}, s35
    s_lshl_b32 s35, {sH}, 10
    s_add_u32 {sMLQ}, s35, {ML}
    s_lshl_b32 s35, {sC}, 7
    s_add_u32 {sMLP}, {sMLQ}, s35
    """)
    if not A:
        g.I(f"""
        s_lshl_b32 s35, {sL}, 12
        s_add_u32 s35, s35, s34
        s_add_u32 {sP2}, s35, {HS}
        s_lshl_b32 s35, {sRHO}, 10
        s_add_u32 {sPUB1}, {sP2}, s35
        {"s_mov_b32 " + sPUB1 + ", " + sOP if "halias" in opt else ""}
        {"s_lshl_b32 s35, " + sRHO + ", 13" if "halias" in opt else ""}
        {"s_sub_u32 " + sP2 + ", " + sOP + ", s35" if "halias" in opt else ""}
        s_mul_i32 s34, {sW}, {136*4}
        s_add_u32 s34, s34, {R1}
        v_lshlrev_b32 v{Q[0]}, 8, v{T[2]}
        v_add3_u32 v{Q[0]}, v{Q[0]}, v{T[0]}, s34
        s_lshl_b32 s34, {sW}, 5
        s_add_u32 s34, s34, {R1}
        v_mul_u32_u24 v{Q[0]+1}, {136*4}, v{T[1]}
        v_lshrrev_b32 v{T[3]}, 2, {vU16}
        v_add3_u32 v{Q[0]+1}, v{Q[0]+1}, v{T[3]}, s34
        s_cmp_eq_u32 {sW}, 0
        s_cselect_b32 s34, 0, {OOB}
        v_and_b32 {vL16}, 63, v0
        v_lshl_add_u32 {vL4}, {vL16}, 2, s34
        v_lshl_add_u32 {vL16}, {vL16}, 4, s34
        """)
    g.C(f"step t of this wave covers the 8 keys of block (64t + 32(c>>2) + 4w + (c&3) + {SHIFT}h) mod 512 of the head's window")
    perm = next((o[4:] for o in opt if o.startswith("perm")), None)
    if perm:
        g.I("s_mov_b32 s35, 0")
        for k, r in (("c", sC), ("w", sW)):
            for b, p in enumerate([5 - i for i, ch in enumerate(perm) if ch == k][::-1]):
                g.I(f"s_bfe_u32 s34, {r}, {0x10000 + b}\ns_lshl_b32 s34, s34, {p}\ns_or_b32 s35, s35, s34")
    else: g.I(f"s_lshr_b32 s35, {sC}, 2\ns_lshl3_add_u32 s35, s35, {sW}\ns_and_b32 s34, {sC}, 3\ns_lshl2_add_u32 s35, s35, s34")
    g.I(f"s_mul_i32 s34, {sH}, {val('sh', SHIFT)}"); g.I("s_add_u32 s35, s35, s34")
    for t in range(8):
        if t: g.I("s_add_u32 s35, s35, 64")
        g.I("s_and_b32 s34, s35, 511"); g.I(f"s_mul_i32 {KSO[t]}, s34, 3072")
    for t in range(8): g.I(f"v_mov_b32 v{S[t]}, 0")
    g.I("s_mov_b32 s14, 0x01000100"); g.I("s_mov_b32 s15, 0x03020302")
    if A and fast:
        g.I("s_waitcnt lgkmcnt(0)"); g.I(f"s_load_dword {sTAG}, s[56:57], 0")
        g.cap(0)
        for _ in range(3): issue()
    if fnear: g.I("s_waitcnt lgkmcnt(0)"); g.I(f"s_load_dword {sTAG}, s[56:57], 0")
    g.wait("x")
    st = dict(aj=0, pub1=False, q=False, qi=False, kt=0, sm=False, vj=0, mli=not A, ml=not A, hi=False, h=A, addr=False, gi=False, g=A)
    landed = lambda x: x in issued and x not in g.vm
    gone = lambda x: x not in g.vm
    g.C("x @ W on this slice: masked-diagonal A fragment (x[row] at element u) times the raw rows as B")
    for t in range(2):
        g.I(f"v_perm_b32 v{T[0]}, v{P}, v{P}, s{14+t}"); g.build_a(AB[t], T[0])
    def a_mfma(j):
        if A:
            t, l = divmod(j, 3)
            g.I(f"{MF} {r4(D[l])}, {r4(AB[t])}, {r4(AR[j])}, {r4(D[l]) if t else 0}")
        else:
            g.I(f"{MF} {r4(D[0])}, {r4(AB[j%2])}, {r4(AR[j])}, {r4(D[0]) if j else 0}")
            if j + 2 < 5:
                t = j + 2
                g.I(f"v_perm_b32 v{T[0]}, v{P+t//2}, v{P+t//2}, s{14+t%2}"); g.build_a(AB[t%2], T[0])
    def pub1():
        g.C("cross-wave sum in LDS, then publish {values, tag + XCC id} granules (plain store: stays in this L2;\na reader behind another L2 makes the wave repeat it write-through, see the *_remote / *_retry blocks)")
        g.lds_put(vWR0 if A else f"v{Q[0]}", list(enumerate(D)) if A else [(0, D[0])])
        g.I("s_waitcnt lgkmcnt(0)"); g.I(f"s_add_u32 {sTAG}, {sTAG}, 0x9e3779b9"); g.I("s_barrier")
        tagx = f"s_add_u32 s34, {sTAG}, {sXCC}\nv_mov_b32 v{P+3}, s34"
        if A: g.red192(tagx)
        else:
            g.I(f"ds_read2_b32 {r2(T[0])}, v{Q[0]+1} offset0:0 offset1:64")
            g.I(tagx); g.I(f"v_mov_b32 v{P+2}, 0")
            g.I("s_waitcnt lgkmcnt(0)")
            g.I(f"v_add_f32 v{P}, v{T[0]}, v{T[1]}")
            g.red_up([P], [T[0]], do32=False)
            g.I(f"v_permlane32_swap_b32 v{P}, v{P+1}")
        g.first_handoff(claim=not A and "claim" in opt)
        g.I(f"s_lshr_b32 {sHI}, {sTAG}, 26\ns_or_b32 {sHI}, {sHI}, 0x43300000\ns_lshl_b32 {sLO}, {sTAG}, 6")
        if not A and val("init", 0) == 0: acc_init()
    def acc_init():
        g.C("40 waves reset the output accumulator cells {f64 sum = 0, f64 2^52 + 64*tag} (others are out of range)")
        g.I(f"""
        s_lshl_b32 s34, {sL}, 1
        s_add_u32 s34, s34, {sRHO}
        s_sub_u32 s34, s34, 2
        s_cmp_ge_u32 {sRHO}, 2
        s_cselect_b32 s34, s34, 64
        s_cmp_eq_u32 {sW}, {val('iw', 1)}
        s_cselect_b32 s34, s34, 64
        s_cmp_lt_u32 s34, 40
        s_cselect_b32 s34, s34, {OOB >> (AS+2)}
        s_lshl_b32 s34, s34, {AS+2}
        v_bfe_u32 v{T[4]}, v0, 2, 2
        v_and_b32 v{T[5]}, 3, v0
        v_lshlrev_b32 v{T[5]}, 4, v{T[5]}
        v_lshl_add_u32 v{T[4]}, v{T[4]}, {AS}, v{T[5]}
        v_add_u32 v{T[4]}, s34, v{T[4]}
        v_mov_b32 v{T[0]}, 0
        v_mov_b32 v{T[1]}, 0
        v_mov_b32 v{T[2]}, {sLO}
        v_mov_b32 v{T[3]}, {sHI}
        s_mov_b32 s34, {FS}
        """)
        g.exec_(0xffff)
        g.vmem("init", f"buffer_store_dwordx4 {r4(T[0])}, v{T[4]}, {WS_}, s34 offen sc1")
        g.exec_(-1)
    def consume_q():
        g.C("q = sum of the five partials, rounded to bf16, shared through LDS")
        g.poll_check("qpoll", sQP, mask=0xffffffffff)
        g.transpose_sum(3)
        g.I(f"""
        v_cvt_pk_bf16_f32 v{T[0]}, v{T[0]}, v{T[1]}
        v_cvt_pk_bf16_f32 v{T[1]}, v{T[2]}, v{T[2]}
        v_lshrrev_b32 v{T[2]}, 3, v0
        v_mul_u32_u24 v{T[2]}, 6, v{T[2]}
        """)
        g.exec_(0x0101010101010101)
        g.I(f"""
        ds_write_b16 v{T[2]}, v{T[0]} offset:{QL}
        ds_write_b16_d16_hi v{T[2]}, v{T[0]} offset:{QL+2}
        ds_write_b16 v{T[2]}, v{T[1]} offset:{QL+4}
        """)
        g.exec_(-1)
        g.I("s_waitcnt lgkmcnt(0)"); g.I("s_barrier")
        for l in range(3): g.I(f"ds_read_b128 {r4(Q[l])}, {vU16} offset:{QL + l*128}")
        g.I("s_waitcnt lgkmcnt(0)")
    def k_octets(ts):
        g.C(f"scores of key blocks {ts}: bf16(bf16(q.k) / sqrt(192))")
        for l in range(3):
            for e in range(4):
                for t in ts: g.I(f"v_dot2c_f32_bf16 v{S[t]}, v{KR[3*t+l]+e}, v{Q[l]+e}")
        g.red_low([S[t] for t in ts])
        a, b = S[ts[0]], S[ts[-1]]
        for k in range(2):
            g.I(f"v_cvt_pk_bf16_f32 v{a}, v{a}, v{b}")
            if b != a: g.I(f"v_and_b32 v{b}, 0xffff0000, v{a}")
            g.I(f"v_lshlrev_b32 v{a}, 16, v{a}")
            if k == 0:
                for r in sorted({a, b}): g.I(f"v_mul_f32 v{r}, {f32(192.0 ** -0.5)}, v{r}")
    def softmax():
        g.C("p = exp2(log2(e)*(s - m_wave)), then rescaled to the workgroup maximum; {max, sum} of the workgroup is published")
        g.I(f"""
        v_max3_f32 v{T[0]}, v{S[0]}, v{S[1]}, v{S[2]}
        v_max3_f32 v{T[1]}, v{S[3]}, v{S[4]}, v{S[5]}
        v_max3_f32 v{T[0]}, v{T[0]}, v{S[6]}, v{S[7]}
        v_max_f32 v{T[0]}, v{T[0]}, v{T[1]}
        """)
        g.red_up([T[0]], [T[1]], op="max")
        g.I(f"""
        v_mul_f32 v{P}, {sCS}, v{T[0]}
        s_lshl_b32 s35, {sW}, 3
        v_readfirstlane_b32 s34, v{P}
        v_mov_b32 v{T[4]}, s35
        v_lshrrev_b32 v{T[5]}, 1, {vU16}
        v_mov_b32 {vF}, s34
        """)
        for t in range(8): g.I(f"v_fma_f32 v{S[t]}, v{S[t]}, {sCS}, -{vF}")
        for t in range(8): g.I(f"v_exp_f32 v{S[t]}, v{S[t]}")
        g.I(f"""
        v_add_f32 v{T[0]}, v{S[0]}, v{S[1]}
        v_add_f32 v{T[1]}, v{S[2]}, v{S[3]}
        v_add_f32 v{T[2]}, v{S[4]}, v{S[5]}
        v_add_f32 v{T[3]}, v{S[6]}, v{S[7]}
        v_add_f32 v{T[0]}, v{T[0]}, v{T[1]}
        v_add_f32 v{T[2]}, v{T[2]}, v{T[3]}
        v_add_f32 v{P+1}, v{T[0]}, v{T[2]}
        """)
        g.red_up([P+1], [T[1]])
        g.exec_(1)
        g.I(f"ds_write_b64 v{T[4]}, {r2(P)} offset:{MLL}")
        g.exec_(-1)
        g.I("s_waitcnt lgkmcnt(0)"); g.I("s_barrier")
        g.I(f"ds_read_b64 {r2(T[0])}, v{T[5]} offset:{MLL}")
        if not A: g.I(f"v_mov_b32 v{T[2]}, 0"); g.I(f"ds_read_b32 v{P+2}, v{T[2]} offset:{GL}")
        g.I(f"v_mov_b32 v{P+3}, {sTAG}")
        g.I(f"s_cmp_eq_u32 {sW}, 0"); g.I(f"s_cselect_b32 s34, 0, {OOB}"); g.I(f"v_add_u32 v{T[4]}, s34, {vU16}")
        g.I("s_waitcnt lgkmcnt(0)")
        g.I(f"v_mov_b32 v{P}, v{T[0]}")
        g.red_low([P], op="max")
        g.I(f"""
        v_sub_f32 v{T[0]}, v{T[0]}, v{P}
        v_sub_f32 {vF}, {vF}, v{P}
        v_exp_f32 v{T[0]}, v{T[0]}
        v_exp_f32 {vF}, {vF}
        v_mul_f32 v{P+1}, v{T[0]}, v{T[1]}
        """)
        for k, pat in enumerate(("quad_perm:[1,0,3,2]", "quad_perm:[2,3,0,1]", "row_half_mirror", None)):
            for t in (2*k, 2*k+1): g.I(f"v_mul_f32 v{S[t]}, v{S[t]}, {vF}")
            if pat: g.I(f"v_add_f32_dpp v{P+1}, v{P+1}, v{P+1} {pat} {DPPM}")
        g.exec_(0xff if "mlfull" in opt else 1)
        g.I(f"s_cmp_lg_u32 {sLOC}, 0")
        g.loc_store("pubml", f"buffer_store_dwordx4 {r4(P)}, v{T[4]}, {WS_}, {sMLP} offen")
        g.exec_(-1)
        for t in range(8): g.I(f"v_cvt_pk_bf16_f32 v{S[t]}, v{S[t]}, v{S[t]}")
        if not A: g.I(f"v_sub_f32 {vF}, 1.0, v{P+2}"); g.I(f"v_cvt_pk_bf16_f32 {vF}, {vF}, {vF}"); g.I(f"v_lshlrev_b32 {vF}, 16, {vF}")
        g.build_a(AB[0], S[0])
        g.C("o += p @ V, same masked-diagonal MFMA form")
    def tail_addr():
        NC, SP, RB = (128, 528, R1) if A else (192, 784, R2)
        g.C("addresses of the output projection stage")
        g.I(f"""
        v_bfe_u32 v{T[1]}, v0, 3, 3
        v_bfe_u32 v{T[0]}, v0, 4, 1
        v_lshlrev_b32 v{T[0]}, 4, v{T[0]}
        v_lshl_add_u32 v{T[0]}, {vU16}, 1, v{T[0]}
        v_bfe_u32 v{T[2]}, v0, 5, 1
        s_lshr_b32 s34, {sW}, 1
        s_mul_i32 s34, s34, {SP*4}
        s_and_b32 s35, {sW}, 1
        s_mul_i32 s35, s35, {NC*8}
        s_add_u32 s34, s34, s35
        s_add_u32 s34, s34, {RB}
        v_mul_u32_u24 {vWR1}, {NC*4}, v{T[2]}
        v_add3_u32 {vWR1}, {vWR1}, v{T[0]}, s34
        v_and_b32 v{T[3]}, 1, v0
        v_lshl_add_u32 v{T[3]}, v{T[2]}, 1, v{T[3]}
        v_mul_u32_u24 {vRD1}, {SP*4}, v{T[3]}
        v_and_b32 v{T[3]}, 30, v0
        s_lshl_b32 s34, {sW}, 6
        s_add_u32 s34, s34, {RB}
        v_lshl_add_u32 {vRD1}, v{T[3]}, 1, {vRD1}
        v_add_u32 {vRD1}, s34, {vRD1}
        v_lshl_add_u32 {vOUT}, v{T[2]}, 8, v{T[3]}
        v_lshrrev_b32 v{T[3]}, 1, {vU16}
        v_lshl_add_u32 {vACC}, v{T[1]}, {AS}, v{T[3]}
        v_mul_u32_u24 v{T[3]}, {7*(4 << AS)}, v{T[2]}
        v_add_u32 {vACC}, {vACC}, v{T[3]}
        v_mov_b32 v{OLD}, 0
        v_mov_b32 v{OLD+1}, 0x3ff00000
        """)
        if A:
            g.C("wo rows 192h + 24w .. +23, columns 128c .. 128c+127")
            g.I(f"""
            v_lshlrev_b32 {vML}, 7, v{T[1]}
            s_mul_i32 s34, {sH}, 192
            s_mul_i32 s35, {sW}, 24
            s_add_u32 s34, s34, s35
            s_mul_i32 s34, s34, 1280
            s_lshl_b32 s35, {sC}, 8
            s_add_u32 s34, s34, s35
            {"" if "sp" in opt else f"v_mul_u32_u24 {vW}, 3840, v{T[1]}"}
            {"" if "sp" in opt else f"v_add3_u32 {vW}, {vW}, {vU16}, s34"}
            s_lshl3_add_u32 {sRED}, {sC}, {sW}
            s_mov_b32 s22, -1
            s_mov_b32 s23, 0
            """)
            if "sp" in opt:
                g.C("""load 2p+s reads rows 24w + 3(4s+g) + p, g = lane>>4, 256 bytes each; a pair of loads is the B operand of one 2:4-sparse
                MFMA whose A fragment holds the single value z[3*a8+p] at logical k = 8*a8 + u""")
                g.I(f"""
                s_movk_i32 s68, 15360
                v_bfe_u32 v{T[0]}, v0, 4, 2
                v_mul_u32_u24 {vW}, 3840, v{T[0]}
                v_and_b32 v{T[0]}, 15, v0
                v_lshl_add_u32 {vW}, v{T[0]}, 4, {vW}
                v_add_u32 {vW}, s34, {vW}
                v_bfe_u32 v{T[2]}, v0, 3, 1
                v_lshl_add_u32 {vWR1}, v{T[2]}, 8, {vWR1}
                v_and_b32 v{T[2]}, 3, v0
                v_cmp_eq_u32 vcc, 3, v{T[2]}
                v_mov_b32 v{T[3]}, 0xffff
                v_mov_b32 v{T[4]}, 0xffff0000
                v_cndmask_b32 v{T[3]}, v{T[3]}, v{T[4]}, vcc
                v_cndmask_b32 v{T[2]}, v{T[2]}, 0, vcc
                v_or_b32 v{T[2]}, 12, v{T[2]}
                v_mul_u32_u24 v{SPI}, 0x1111, v{T[2]}
                v_bfe_u32 v{T[0]}, v0, 2, 2
                """)
                for w in range(4):
                    g.I(f"v_cmp_eq_u32 vcc, {w}, v{T[0]}"); g.I(f"v_mov_b32 v{SPD+w}, 0"); g.I(f"v_cndmask_b32 v{SPM+w}, 0, v{T[3]}, vcc")
        else:
            g.C("w2 rows 64l + 8w + a8, columns from 0 / 192 / 384 / 512 (192,192,128,128 wide) by rho")
            g.I(f"""
            s_mul_i32 {sRED}, {sRHO}, 12
            s_min_u32 {sRED}, {sRED}, 32
            s_lshl_b32 s34, {sL}, 6
            s_lshl_b32 s35, {sW}, 3
            s_add_u32 s34, s34, s35
            s_mul_i32 s34, s34, 1280
            s_lshl_b32 s35, {sRED}, 5
            s_add_u32 s34, s34, s35
            v_mul_u32_u24 {vW}, 1280, v{T[1]}
            v_add3_u32 {vW}, {vW}, {vU16}, s34
            s_cmp_ge_u32 {sRHO}, 2
            s_cselect_b32 s34, {OOB}, 0
            s_cselect_b32 s23, 0, -1
            v_add_u32 v{AB3[1]}, s34, {vW}
            s_cmp_ge_u32 {sW}, 4
            s_cselect_b32 s23, 0, s23
            s_mov_b32 s22, -1
            s_add_u32 {sRED}, {sRED}, {sW}
            """)
        g.I(f"s_lshl_b32 {sFP}, {sRED}, {AS+2}\ns_add_u32 {sFP}, {sFP}, {FS}\ns_lshl_b32 {sRED}, {sRED}, 5\ns_add_u32 s5, {sTAG}, 16")
    def consume_ml():
        g.C("softmax weight of each of the 8 partial o's: exp2(m_c - M) / L; the gate g rides in an F granule")
        g.poll_check("mlpoll", sMLQ, voff=vML)
        if "rearly" in opt:
            g.C("all 8 workgroups of this head hold the tag now: count heads in d_debug[0]")
            g.I(f"s_or_b32 s34, {sC}, {sW}\ns_cbranch_scc1 L_A_nocount\ns_mov_b32 s12, 1\ns_atomic_add s12, s[10:11], 0 glc\nL_A_nocount:")
        g.I(f"v_mov_b32 v{T[0]}, v{P}")
        g.I(f"v_readlane_b32 {sG}, v{P+2}, 40")
        g.red_up([T[0]], [T[1]], op="max")
        g.I(f"""
        v_readfirstlane_b32 s34, v{T[0]}
        v_subrev_f32 {vF}, s34, v{P}
        v_exp_f32 {vF}, {vF}
        v_mul_f32 v{T[0]}, {vF}, v{P+1}
        """)
        g.red_up([T[0]], [T[1]])
        g.I(f"v_rcp_f32 v{T[0]}, v{T[0]}\nv_readfirstlane_b32 s34, v{T[0]}\nv_mul_f32 {vF}, s34, {vF}")
        if "gfold" in opt: g.I(f"v_mul_f32 {vF}, {sG}, {vF}")
        if "tpoll" in opt: g.I(f"ds_bpermute_b32 {vF}, {vBP}, {vF}\nds_bpermute_b32 v154, {vBP}, {vPOLL}\ns_waitcnt lgkmcnt(0)")
    def consume_h():
        g.C("h = silu(gate) * up from the four row-quarter partials")
        g.poll_check("hpoll", sP2, mask=0xffffffff)
        g.transpose_sum(2)
        g.I(f"""
        v_cvt_pk_bf16_f32 v{T[0]}, v{T[0]}, v{T[1]}
        v_and_b32 v{T[1]}, 0xffff0000, v{T[0]}
        v_lshlrev_b32 v{T[0]}, 16, v{T[0]}
        v_mul_f32 v{T[2]}, {f32(-LOG2E)}, v{T[0]}
        v_exp_f32 v{T[2]}, v{T[2]}
        v_add_f32 v{T[2]}, 1.0, v{T[2]}
        v_rcp_f32 v{T[2]}, v{T[2]}
        v_mul_f32 v{T[0]}, v{T[0]}, v{T[2]}
        v_cvt_pk_bf16_f32 v{T[0]}, v{T[0]}, v{T[0]}
        v_lshlrev_b32 v{T[0]}, 16, v{T[0]}
        v_mul_f32 v{T[0]}, v{T[0]}, v{T[1]}
        v_cvt_pk_bf16_f32 v{T[0]}, v{T[0]}, v{T[0]}
        """)
        g.build_a(AB3[0], T[0])
    def g_issue():
        g.C("gate operands (in range for wave 0 only)")
        g.vmem("gx4", f"buffer_load_dwordx4 {r4(XX)}, {vL16}, {X_}, 0 offen")
        g.vmem("gx1", f"buffer_load_dword v{XX+4}, {vL4}, {X_}, 0 offen offset:1024")
        g.vmem("gg4", f"buffer_load_dwordx4 {r4(GG)}, {vL16}, {G_}, 0 offen")
        g.vmem("gg1", f"buffer_load_dword v{GG+4}, {vL4}, {G_}, 0 offen offset:1024")
    def g_compute():
        g.C("g = sigmoid(sum(x * gate_w)) -> LDS")
        g.I(f"s_cmp_lg_u32 {sW}, 0"); g.I("s_cbranch_scc1 L_F_nog")
        g.I(f"v_mov_b32 {vG}, 0")
        for k in range(5):
            g.I(f"""
            v_lshlrev_b32 v{T[1]}, 16, v{XX+k}
            v_lshlrev_b32 v{T[2]}, 16, v{GG+k}
            v_and_b32 v{XX+k}, 0xffff0000, v{XX+k}
            v_and_b32 v{GG+k}, 0xffff0000, v{GG+k}
            v_mul_f32 v{T[1]}, v{T[1]}, v{T[2]}
            v_mul_f32 v{T[2]}, v{XX+k}, v{GG+k}
            v_cvt_pk_bf16_f32 v{T[1]}, v{T[1]}, v{T[2]}
            v_lshlrev_b32 v{T[2]}, 16, v{T[1]}
            v_and_b32 v{T[1]}, 0xffff0000, v{T[1]}
            v_add_f32 {vG}, {vG}, v{T[2]}
            v_add_f32 {vG}, {vG}, v{T[1]}
            """)
        gi = int(vG[1:])
        g.red_low([gi]); g.red_up([gi], [T[1]])
        g.I(f"""
        v_cvt_pk_bf16_f32 {vG}, {vG}, {vG}
        v_lshlrev_b32 {vG}, 16, {vG}
        v_mul_f32 {vG}, {f32(-LOG2E)}, {vG}
        v_exp_f32 {vG}, {vG}
        v_add_f32 {vG}, 1.0, {vG}
        v_rcp_f32 {vG}, {vG}
        v_cvt_pk_bf16_f32 {vG}, {vG}, {vG}
        v_lshlrev_b32 {vG}, 16, {vG}
        s_mov_b64 exec, 1
        ds_write_b32 {vL4}, {vG} offset:{GL}
        s_mov_b64 exec, -1
        L_F_nog:
        """)
    def v_mfma(j):
        t, l = divmod(j, 3)
        g.I(f"{MF} {r4(D[l])}, {r4(AB[t%2])}, {r4(VR[j])}, {r4(D[l]) if t else 0}")
        if l == 0 and t < 7: g.build_a(AB[(t+1)%2], S[t+1])
    def work():
        while st["aj"] < nA and landed(f"A{st['aj']}"):
            a_mfma(st["aj"]); st["aj"] += 1
        if st["aj"] == nA and not st["pub1"]: pub1(); st["pub1"] = True
        if not st["g"] and not st["gi"] and f"K{val('gp', 7)}" in issued: g_issue(); st["gi"] = True
        elif st["gi"] and not st["g"] and gone("gg1"): g_compute(); st["g"] = True
        if not st["qi"] and f"K{val('qp', 17)}" in issued:
            assert st["g"]
            g.poll_issue("qpoll", sQP, mask=0xffffffffff); st["qi"] = True
        elif st["qi"] and not st["q"] and gone("qpoll"): consume_q(); st["q"] = True
        elif st["q"] and st["kt"] < 8:
            ts = [t for t in range(st["kt"], min(st["kt"]+2, 8)) if landed(f"K{3*t+2}")]
            if "k1" in opt and st.get("kpos") == pos[0]: ts = []
            if ts: k_octets(ts); st["kt"] = ts[-1] + 1; st["kpos"] = pos[0]
        if not A and val("init", 0) and not st.get("ini") and seq[nA + val("init", 0)] in issued: acc_init(); st["ini"] = True
        if st["kt"] == 8 and not st["sm"]:
            if "sm2" not in opt or pos[0] > st["kpos"]: softmax(); st["sm"] = True; st["smpos"] = pos[0]
        elif st["sm"] and not st["addr"]:
            if "addr2" not in opt or pos[0] > st["smpos"]: tail_addr(); st["addr"] = True
        elif st["addr"] and not st["h"] and not st["hi"]:
            if "halias" in opt: g.I(f"v_bfe_u32 {vPOLL}, v0, 3, 3\nv_lshl_add_u32 {vPOLL}, {vPOLL}, 13, {vU16}")
            g.poll_issue("hpoll", sP2, mask=0xffffffff); st["hi"] = True
        elif st["hi"] and not st["h"] and gone("hpoll"): consume_h(); st["h"] = True
        if st["addr"] and not st["mli"] and f"V{val('mlp', 14)}" in issued: g.poll_issue("mlpoll", sMLQ, voff=vML); st["mli"] = True
        elif st["mli"] and not st["ml"] and gone("mlpoll"): consume_ml(); st["ml"] = True
        if st["sm"]:
            while st["vj"] < 24 and landed(f"V{st['vj']}"): v_mfma(st["vj"]); st["vj"] += 1
    starts = {}
    if "a4v" in opt and A: starts = {"V12": False, "V13": True, "V15": False, "V17": True, "V18": False}
    if "a4k" in opt and A: starts = {"K6": False, "K7": True, "K9": False, "K11": True, "K12": False}
    if "fk" in opt and not A: starts = {"K0": False, "K1": True}
    if A and fast: work()
    while st["vj"] < 24:
        roll = "roll" in opt or ("rollkv" in opt and seq[pos[0]][0] in "KV" and seq[pos[0]] != "K0")
        prev = [x for x in g.vm if x[0] in "AKVW"]
        def pre():
            if prev: g.wait(prev.pop(0))
        if roll: pre()
        else: g.cap(0)
        issue()
        while pos[0] < len(seq) and not starts.get(seq[pos[0]], int(seq[pos[0]][1:]) % 3 == 0):
            if roll: pre()
            issue()
        if roll:
            while prev: pre()
        work(); work()
    assert st["ml"] and st["h"] and st["g"]
    g.C("publish this workgroup's partial o with tag + 16 (L2-resident when every reader shares this L2, else write-through);\nan A slot reuses its q slot: all 8 workgroups of the head consumed q before they published {max, sum}")
    for _ in range(val("wpre", 0)):
        if pos[0] < len(seq): issue()
    g.lds_put(vWR0, list(enumerate(D)))
    for _ in range(val("wmid", 0)):
        if pos[0] < len(seq): issue()
    g.I("s_waitcnt lgkmcnt(0)"); g.I("s_barrier")
    for _ in range(val("wbar", 0)):
        if pos[0] < len(seq): issue()
    g.red192(f"v_mov_b32 v{P+3}, s5\ns_cmp_lg_u32 {sLOC}, 0")
    g.exec_(0xff)
    g.loc_store("pubo", f"buffer_store_dwordx4 {r4(P)}, {vU16}, {WS_}, {sOP} offen")
    g.exec_(-1)
    early = A and "early" in opt
    if early: g.vmem("op0", f"buffer_load_dwordx4 {r4(PO)}, {vPOLL}, {WS_}, {sP2} offen sc1")
    while pos[0] < len(seq): issue()
    X, Y = AB3[0], AB3[1]
    if A and "rearly" in opt:
        g.I("s_and_b32 s12, s12, 31\ns_cmp_eq_u32 s12, 31\ns_cbranch_scc1 L_A_retire\nL_A_retired:")
        g.cold += ["L_A_retire:", "  ; last head counted: every workgroup has read ws[0], retire this launch's tag",
                   "  s_mov_b64 exec, 1", f"  v_mov_b32 v{T[4]}, {sTAG}", f"  buffer_store_dword v{T[4]}, {vU16}, {WS_}, 0 offen {'' if 'rep' in opt else 'sc1'}", "  s_mov_b64 exec, -1", "  s_branch L_A_retired"]
    if A:
        g.C("gather the 8 partial o's of rows 24w .. 24w+23, weight, sum, multiply with wo")
        tp = "tpoll" in opt
        if early:
            g.wait("op0"); keep = list(g.vm)
            g.I(f"v_cmp_ne_u32 vcc, s5, v{PO+3}")
            for t in range(3): g.I(f"v_mul_f32 v{PO+t}, v{PO+t}, {vF}")
            g.I("s_cbranch_vccz L_A_ook")
        if val("opw", 3) >= 0: g.wait(f"W{val('opw', 3)}")
        g.I("L_A_opoll:")
        g.I(f"buffer_load_dwordx4 {r4(PO)}, {'v154' if tp else vPOLL}, {WS_}, {sP2} offen sc1")
        g.I(f"s_add_u32 {sSPIN}, {sSPIN}, 1\ns_cmp_gt_u32 {sSPIN}, {SPINMAX}\ns_cbranch_scc1 L_A_exit")
        g.I("s_waitcnt vmcnt(0)"); g.vm = []
        g.I(f"v_cmp_ne_u32 vcc, s5, v{PO+3}")
        for t in range(3): g.I(f"v_mul_f32 v{T[t] if tp else PO+t}, v{PO+t}, {vF}")
        g.I("s_cbranch_vccnz L_A_opoll")
        if early: g.I("L_A_ook:"); g.vm = keep
        if tp: g.red_low(T[0:3])
        else: g.transpose_sum(3, src=PO)
        for t in range(3): g.I(f"v_cvt_pk_bf16_f32 v{T[t]}, v{T[t]}, v{T[t]}")
        if "sp" in opt:
            ba = lambda p: [g.I(f"v_and_b32 v{AB3[p]+w}, v{T[p]}, v{SPM+w}") for w in range(4)]
            sm = lambda p: g.I(f"v_smfmac_f32_16x16x64_bf16 {r4(SPD)}, {r4(AB3[p])}, v[{WR[2*p]}:{WR[2*p]+7}], v{SPI}")
            ba(0); ba(1); sm(0); ba(2); sm(1); sm(2)
            g.I("s_nop 7")
            g.I(f"ds_write_b128 {vWR1}, {r4(SPD)}")
        else:
            g.build_a(AB3[0], T[0]); g.build_a(AB3[1], T[1])
            for l in range(2): g.I(f"{MF} {r4(D[l])}, {r4(AB3[0])}, {r4(WR[l])}, 0")
            g.build_a(AB3[2], T[2])
            for t in range(1, 3):
                for l in range(2):
                    g.wait(f"W{2*t+l}")
                    g.I(f"{MF} {r4(D[l])}, {r4(AB3[t])}, {r4(WR[2*t+l])}, {r4(D[l])}")
            g.lds_put(vWR1, [(0, D[0]), (1, D[1])])
        g.I("s_waitcnt lgkmcnt(0)"); g.I("s_barrier")
        g.I(f"""
        ds_read2st64_b32 {r2(X)}, {vRD1} offset0:0 offset1:2
        ds_read2st64_b32 {r2(X+2)}, {vRD1} offset0:4 offset1:6
        s_waitcnt lgkmcnt(1)
        v_add_f32 v{X}, v{X}, v{X+1}
        s_waitcnt lgkmcnt(0)
        v_add_f32 v{X+2}, v{X+2}, v{X+3}
        v_add_f32 v{X}, v{X}, v{X+2}
        v_permlane32_swap_b32 v{X}, v{X+1}
        v_add_f32 v{X}, v{X}, v{X+1}
        v_add_f32_dpp v{X}, v{X}, v{X} quad_perm:[1,0,3,2] {DPPM}
        s_mov_b64 exec, 0x55555555
        {"" if "gfold" in opt else f"v_mul_f32 v{X}, {sG}, v{X}"}
        """)
    else:
        g.C("h @ w2 on this slice")
        for l in range(3):
            g.wait(f"W{l}")
            g.I(f"{MF} {r4(D[l])}, {r4(AB3[0])}, {r4(WR[l])}, 0")
        g.lds_put(vWR1, list(enumerate(D)))
        g.I("s_waitcnt lgkmcnt(0)"); g.I("s_barrier")
        g.I(f"""
        ds_read2st64_b32 {r2(X)}, {vRD1} offset0:0 offset1:3
        ds_read2st64_b32 {r2(X+2)}, {vRD1} offset0:6 offset1:9
        ds_read2st64_b32 {r2(Y)}, {vRD1} offset0:2 offset1:5
        ds_read2st64_b32 {r2(Y+2)}, {vRD1} offset0:8 offset1:11
        s_waitcnt lgkmcnt(0)
        """)
        for b in (X, Y): g.I(f"v_add_f32 v{b}, v{b}, v{b+1}"); g.I(f"v_add_f32 v{b+2}, v{b+2}, v{b+3}")
        for b in (X, Y): g.I(f"v_add_f32 v{b}, v{b}, v{b+2}")
        g.I(f"""
        v_permlane32_swap_b32 v{X}, v{Y}
        v_add_f32 v{X}, v{X}, v{Y}
        v_add_f32_dpp v{X}, v{X}, v{X} quad_perm:[1,0,3,2] {DPPM}
        s_mov_b32 exec_lo, 0x55555555
        s_mov_b32 exec_hi, 0x55555555
        v_mul_f32 v{X}, v{X}, {vF}
        """)
    g.C(f"""final reduction: one returning f64 add per 16-byte cell; even lanes add the gated partial, odd lanes add 1.0 to
    the cell's arrival counter.  The wave whose add is the last of the {NADD} owns the total and writes that output element.""")
    g.I(f"""
    v_cvt_f64_f32 {r2(OLD)}, v{X}
    s_mov_b64 exec, {sAM}
    L_{role}_acc:
    buffer_atomic_add_f64 {r2(OLD)}, {vACC}, {WS_}, {sFP} offen sc0 sc1
    v_cvt_f64_f32 {r2(OWN)}, v{X}
    s_mov_b32 s4, 0xaaaaaaaa
    s_mov_b32 s5, 0xaaaaaaaa
    s_add_u32 {sSPIN}, {sSPIN}, 1
    s_waitcnt vmcnt(0)
    v_add_f64 {r2(T[0])}, {r2(OLD)}, {r2(OWN)}
    v_subrev_u32 v{T[2]}, {sLO}, v{OLD}
    v_cmp_ne_u32 s[18:19], {sHI}, v{OLD+1}
    v_cvt_f32_f64 v{T[0]}, {r2(T[0])}
    v_cmp_lt_u32 s[14:15], {NADD-1}, v{T[2]}
    v_cmp_eq_u32 vcc, {NADD-1}, v{T[2]}
    v_cvt_pk_bf16_f32 v{T[0]}, v{T[0]}, v{T[0]}
    s_andn2_b64 vcc, vcc, s[18:19]
    s_and_b64 vcc, vcc, s[4:5]
    s_lshr_b64 exec, vcc, 1
    s_cbranch_execz L_{role}_notlast
    buffer_store_short v{T[0]}, {vOUT}, {O_}, {sRED} offen
    """)
    if "rearly" not in opt:
        g.I(f"s_cmp_lg_u32 {sRED}, 0\ns_cbranch_scc1 L_{role}_notlast\ns_and_b64 exec, exec, 1\ns_cbranch_execz L_{role}_notlast")
        g.C("every workgroup has read ws[0] by now: retire this launch's tag")
        g.I(f"v_mov_b32 v{T[1]}, {sTAG}\nbuffer_store_dword v{T[1]}, {vOUT}, {WS_}, 0 offen {'' if 'rplain' in opt else 'sc1'}")
    g.I(f"""
    L_{role}_notlast:
    s_or_b64 s[18:19], s[18:19], s[14:15]
    s_and_b64 s[18:19], s[18:19], s[4:5]
    s_cbranch_scc1 L_{role}_again
    s_endpgm
    """)
    g.cold += [f"L_{role}_again:", "  ; a cell was not reset yet: the add is void (the reset overwrites it), so repeat it",
               "  s_mov_b64 exec, s[18:19]", f"  v_mov_b32 v{OLD}, 0", f"  v_mov_b32 v{OLD+1}, 0x3ff00000",
               "  s_lshr_b64 exec, s[18:19], 1", f"  v_cvt_f64_f32 {r2(OLD)}, v{X}", "  s_or_b64 exec, exec, s[18:19]",
               f"  s_cmp_gt_u32 {sSPIN}, {SPINMAX}", f"  s_cbranch_scc0 L_{role}_acc"]
    return g.L + ["  ; ---- rarely taken paths"] + g.cold + [f"L_{role}_exit:", "  s_endpgm"]

DOC = f"""; One launch, 256 workgroups (one per CU) x 8 waves; workgroup = (head h, slice c), every byte is read once (nt).
"""
def gen(path, scramble=0, fast=False, opt=()):
    e = G("E")
    if scramble:
        e.I("s_cmp_ge_u32 s2, 256"); e.I("s_cbranch_scc1 L_F_exit")
        if scramble == 1: e.I("s_lshr_b32 s3, s2, 3\ns_and_b32 s2, s2, 7\ns_lshl_b32 s2, s2, 5\ns_or_b32 s2, s2, s3")
        elif scramble == 2: e.I("s_cmp_ge_u32 s2, 160\ns_cselect_b32 s3, 1, 0\ns_xor_b32 s2, s2, s3")
        elif scramble == 3: e.I("s_bfe_u32 s3, s2, 0x20003\ns_cmp_eq_u32 s3, 3\ns_cselect_b32 s3, 1, 0\ns_xor_b32 s2, s2, s3")
        elif scramble == 4: e.I("s_mul_i32 s2, s2, 37\ns_lshr_b32 s3, s2, 4\ns_and_b32 s3, s3, 7\ns_and_b32 s2, s2, 255\ns_xor_b32 s2, s2, s3")
    ptr(e, A_, 24); ptr(e, X_, 0)
    e.I("s_load_dwordx4 s[16:19], s[0:1], 48")
    if not fast: ptr(e, K_, 8); ptr(e, WS_, 96)
    e.I("s_cmpk_ge_u32 s2, 160\ns_cbranch_scc1 L_F")
    pa, pf = program("A", fast, opt), program("F", fast, opt)
    if "fnear" in opt:
        ia = [k for k, l in enumerate(pa) if l.strip() == "@SPLIT"][0]; jf = [k for k, l in enumerate(pf) if l.strip() == "@SPLIT"][0]
        L = fix_hazards(e.L + pa[:ia]) + fix_hazards(pf[:jf]) + fix_hazards(pa[ia+1:]) + fix_hazards(pf[jf+1:])
    else: L = fix_hazards(e.L + pa) + fix_hazards(pf)
    txt = HDR + f"; @launch grid=(256,1,1) block=(512,1,1) lds={LDS_BYTES}\n" + DOC
    txt += '.amdgcn_target "amdgcn-amd-amdhsa--gfx950"\n.text\n' + f".globl {KN}_kernel\n.p2align 8\n.type {KN}_kernel,@function\n{KN}_kernel:\n"
    txt += "\n".join(L) + "\n"
    txt += f""".section .rodata,"a"
.p2align 6
.amdhsa_kernel {KN}_kernel
  .amdhsa_next_free_vgpr 256
  .amdhsa_next_free_sgpr 96
  .amdhsa_accum_offset 256
  .amdhsa_group_segment_fixed_size 0
  .amdhsa_kernarg_size 104
  .amdhsa_user_sgpr_count 2
  .amdhsa_user_sgpr_kernarg_segment_ptr 1
  .amdhsa_system_sgpr_workgroup_id_x 1
.end_amdhsa_kernel
"""
    open(path, "w").write(txt)
FINAL = dict(fast=True, opt=("mlfull", "alias", "wpre1", "opw4", "sp", "rearly", "addr2", "qp14", "gp4"))
if __name__ == "__main__":
    gen("final.s", **FINAL)
    for k in (1, 2, 3, 4): gen(f"final_sc{k}.s", scramble=k, **FINAL)
```
